```python
import torch

def _softmax(x, axis=-1):
    return torch.softmax(x, dim=axis)
def _gelu(x):
    return torch.nn.functional.gelu(x, approximate="tanh")
def _silu(x):
    return torch.nn.functional.silu(x)
def _sigmoid(x):
    return torch.sigmoid(x)
def _layernorm(x, axis=-1, eps=1e-5):
    m = x.mean(dim=axis, keepdim=True)
    v = x.var(dim=axis, keepdim=True, unbiased=False)
    return (x - m) / torch.sqrt(v + eps)
def _scatter_add(tgt, idx, src, axis=0):
    return tgt.clone().index_add_(axis, idx, src)
def _segment_sum(src, seg, n):
    out = torch.zeros((n,) + src.shape[1:], dtype=src.dtype)
    return out.index_add_(0, seg, src)
def _pad(x, pw):
    flat = tuple(v for pair in reversed(pw) for v in pair)
    return torch.nn.functional.pad(x, flat)

kernel_name = 'gated_mix__ssm_conv_s5__linear_kernel_hedgehog__prompt'

def setup_inputs():

    _w = (lambda a: (lambda t: t.to(torch.bfloat16) if t.is_floating_point() else t)(torch.as_tensor(a)))
    def _A_setup():
        B, S, D = 1, 2048, 576
        P = D
        Lambda_re = -0.5 * (lambda _x: torch.exp(torch.as_tensor(_x)))((lambda *s: torch.randn(*s, dtype=torch.bfloat16) * 0.8)(P))
        Lambda_im = (lambda *s: torch.randn(*s, dtype=torch.bfloat16) * 0.8)(P) * 1.0
        B_re = (lambda *s: torch.randn(*s, dtype=torch.bfloat16) * 0.8)(P, D) * (D ** -0.5)
        B_im = (lambda *s: torch.randn(*s, dtype=torch.bfloat16) * 0.8)(P, D) * (D ** -0.5)
        C_re = (lambda *s: torch.randn(*s, dtype=torch.bfloat16) * 0.8)(D, P) * (P ** -0.5)
        C_im = (lambda *s: torch.randn(*s, dtype=torch.bfloat16) * 0.8)(D, P) * (P ** -0.5)
        log_dt = (lambda *s: torch.randn(*s, dtype=torch.bfloat16) * 0.8)(P) * 0.3 - 2.0
        Dskip = (lambda *s: torch.randn(*s, dtype=torch.bfloat16) * 0.8)(D)
        return {
            "x": _w((lambda *s: torch.randn(*s, dtype=torch.bfloat16) * 0.05)(B, S, D)),
            "Lambda_re": _w(Lambda_re),
            "Lambda_im": _w(Lambda_im),
            "B_re": _w(B_re),
            "B_im": _w(B_im),
            "C_re": _w(C_re),
            "C_im": _w(C_im),
            "log_dt": _w(log_dt),
            "Dskip": _w(Dskip),
        }
    _A_in = _A_setup()

    def _B_setup():
        B, S, D, H = 1, 2048, 576, 32
        Dh = D // H
        return {
            "x": _w((lambda *s: torch.randn(*s, dtype=torch.bfloat16) * 0.05)(B, S, D)),
            "wqkv": _w((lambda *s: torch.randn(*s, dtype=torch.bfloat16) * 1.6)(D, 3 * D)),
            "w_phi": _w((lambda *s: torch.randn(*s, dtype=torch.bfloat16) * 1.6)(H, Dh, Dh) * (Dh ** -0.5)),
            "wo": _w((lambda *s: torch.randn(*s, dtype=torch.bfloat16) * 0.05)(D, D)),
        }
    _B_in = _B_setup()

    return {
        "A_x": _A_in["x"],
        "A_Lambda_re": _A_in["Lambda_re"],
        "A_Lambda_im": _A_in["Lambda_im"],
        "A_B_re": _A_in["B_re"],
        "A_B_im": _A_in["B_im"],
        "A_C_re": _A_in["C_re"],
        "A_C_im": _A_in["C_im"],
        "A_log_dt": _A_in["log_dt"],
        "A_Dskip": _A_in["Dskip"],
        "B_x": _B_in["x"],
        "B_wqkv": _B_in["wqkv"],
        "B_w_phi": _B_in["w_phi"],
        "B_wo": _B_in["wo"],
        "gate_w": _w((lambda *s: torch.randn(*s, dtype=torch.bfloat16) * 0.05)(576) * 16.0),
    }

def reference(A_x, A_Lambda_re, A_Lambda_im, A_B_re, A_B_im, A_C_re, A_C_im, A_log_dt, A_Dskip, B_x, B_wqkv, B_w_phi, B_wo, gate_w):
    def _A_ref(x, Lambda_re, Lambda_im, B_re, B_im, C_re, C_im, log_dt, Dskip):
        Bsz, L, H = x.shape
        Lam = Lambda_re + 1j * Lambda_im
        Bmat = B_re + 1j * B_im
        Cmat = C_re + 1j * C_im
        dt = torch.exp(log_dt)
        Lam_bar = torch.exp(dt * Lam)
        B_bar = ((Lam_bar - 1.0) / Lam)[:, None] * Bmat
        Bu = torch.einsum("bld,pd->blp", x + 0j, B_bar)
        h = torch.zeros_like(Bu[:, 0, :])
        hs = []
        for t in range(L):
            h = Lam_bar[None, :] * h + Bu[:, t, :]
            hs.append(h)
        hseq = torch.stack(hs, 1)
        y = 2.0 * torch.einsum("blp,dp->bld", hseq, Cmat).real + x * Dskip[None, None, :]
        return y

    def _B_ref(x, wqkv, w_phi, wo):
        B, S, D = x.shape
        H = 32; Dh = D // H
        qkv = (lambda x, *d: x.permute(*d))((x @ wqkv).reshape(B, S, 3, H, Dh), 2, 0, 3, 1, 4)
        q, k, v = qkv[0], qkv[1], qkv[2]
        pq = torch.einsum("bhsd,hdf->bhsf", q, w_phi)
        pk = torch.einsum("bhsd,hdf->bhsf", k, w_phi)
        phi_q = torch.concatenate([_softmax(pq, axis=-1), _softmax(-pq, axis=-1)], axis=-1)
        phi_k = torch.concatenate([_softmax(pk, axis=-1), _softmax(-pk, axis=-1)], axis=-1)
        kv = torch.einsum("bhsf,bhsd->bhfd", phi_k, v)
        z  = torch.einsum("bhsf->bhf", phi_k)
        num = torch.einsum("bhqf,bhfd->bhqd", phi_q, kv)
        den = torch.einsum("bhqf,bhf->bhq", phi_q, z)[..., None] + 1e-6
        o = num / den
        return (lambda x, *d: x.permute(*d))(o, 0, 2, 1, 3).reshape(B, S, D) @ wo

    x = A_x
    g = _sigmoid((x * gate_w).sum(-1, keepdims=True))
    a = _A_ref(x, A_Lambda_re, A_Lambda_im, A_B_re, A_B_im, A_C_re, A_C_im, A_log_dt, A_Dskip)
    b = _B_ref(x, B_wqkv, B_w_phi, B_wo)
    return g * a + (1 - g) * b
```

```python
NAME = "gated_mix__ssm_conv_s5__linear_kernel_hedgehog__prompt"
class Asm:
    def __init__(self):
        self.lines = []
        self._lab = 0
    def __call__(self, s, *more):
        for ln in (s,) + more:
            for l in ln.split("\n"):
                l = l.strip()
                if l: self.lines.append("    " + l)
    def label(self, n): self.lines.append(f"{n}:")
    def newlabel(self, p="L"):
        self._lab += 1; return f"{p}_{self._lab}"
    def c(self, s): self.lines.append(f"    ; {s}")
    def text(self): return "\n".join(self.lines) + "\n"

def kernel_text(name, body, vgpr=256, sgpr=102, accum=None):
    if accum is None: accum = min(256, (vgpr + 3) // 4 * 4)
    t = f".globl {name}\n.p2align 8\n.type {name},@function\n{name}:\n" + body
    d = f""".p2align 6
.amdhsa_kernel {name}
  .amdhsa_next_free_vgpr {vgpr}
  .amdhsa_next_free_sgpr {sgpr}
  .amdhsa_accum_offset {accum}
  .amdhsa_group_segment_fixed_size 0
  .amdhsa_kernarg_size 136
  .amdhsa_user_sgpr_count 2
  .amdhsa_user_sgpr_kernarg_segment_ptr 1
  .amdhsa_system_sgpr_workgroup_id_x 1
  .amdhsa_float_denorm_mode_32 3
.end_amdhsa_kernel
"""
    return t, d

def file_text(launches, kernels, header=""):
    s = header
    if len(launches) == 1 and launches[0][0] == NAME + "_kernel":
        k, g, b, l = launches[0]
        s += f"; @launch grid=({g},1,1) block=({b},1,1) lds={l}\n"
    else:
        for k, g, b, l in launches:
            s += f"; @launch kernel={k} grid=({g},1,1) block=({b},1,1) lds={l}\n"
    s += '.amdgcn_target "amdgcn-amd-amdhsa--gfx950"\n.text\n'
    for t, d in kernels: s += t
    s += '.section .rodata,"a"\n'
    for t, d in kernels: s += d
    return s
```

```python
import re
TRANS = ("v_exp_f32", "v_log_f32", "v_rcp_f32", "v_rsq_f32", "v_sqrt_f32", "v_sin_f32", "v_cos_f32")
def regs(tok):
    tok = tok.strip().lstrip("-")
    if tok.startswith("abs("): tok = tok[4:-1]
    tok = tok.strip("|")
    m = re.fullmatch(r"([vsa])(\d+)", tok)
    if m: return {(m.group(1), int(m.group(2)))}
    m = re.fullmatch(r"([vsa])\[(\d+):(\d+)\]", tok)
    if m: return {(m.group(1), i) for i in range(int(m.group(2)), int(m.group(3))+1)}
    if tok in ("vcc", "vcc_lo", "vcc_hi"): return {("s", "vcc")}
    if tok in ("exec", "exec_lo", "exec_hi"): return {("s", "exec")}
    if tok == "m0": return {("s", "m0")}
    return set()
class I: pass
def parse(line):
    t = line.split(";")[0].strip()
    if not t or t.endswith(":") or t.startswith("."): return None
    p = t.split(None, 1); op = p[0]; rest = p[1] if len(p) > 1 else ""
    ops = [x.strip() for x in re.split(r",(?![^\[]*\])", rest)] if rest else []
    if ops:
        last = ops[-1].split(); mods = " ".join(last[1:]); ops[-1] = last[0] if last else ""
    else: mods = ""
    i = I(); i.op = op; i.mods = mods; i.d = set(); i.s = set(); i.ops = ops
    i.valu = op.startswith("v_") and not op.startswith("v_mfma"); i.mfma = op.startswith("v_mfma")
    i.salu = op.startswith("s_"); i.ds = op.startswith("ds_"); i.vmem = op.startswith(("buffer_", "global_"))
    i.dpp = "_dpp" in op or "quad_perm" in mods or "row_" in mods; i.perm = op.startswith("v_permlane")
    i.lds_dma = i.vmem and (" lds" in " " + mods or "load_lds" in op)
    i.store = i.vmem and ("store" in op or "atomic" in op); i.data = set()
    R = [regs(x) for x in ops]
    if i.valu or i.mfma:
        i.d = set(R[0]); srcs = R[1:]
        if op.startswith(("v_add_co", "v_addc_co", "v_sub_co", "v_subb_co")): i.d |= R[1]; srcs = R[2:]
        for r in srcs: i.s |= r
        if op.startswith(("v_fmac", "v_writelane")) or i.perm or i.dpp: i.s |= R[0]
        if i.perm: i.d |= R[1]
        if i.mfma: i.ab = R[1] | R[2]; i.c = R[3]
    elif i.ds:
        if "read" in op: i.d = set(R[0]); [i.s.update(r) for r in R[1:]]
        else: [i.s.update(r) for r in R]
    elif i.vmem:
        if i.lds_dma: [i.s.update(r) for r in R]
        elif i.store:
            [i.s.update(r) for r in R]
            i.data = R[0] if op.startswith("buffer_") else R[1]
        else: i.d = set(R[0]); [i.s.update(r) for r in R[1:]]
    elif i.salu:
        if op.startswith(("s_cmp", "s_cbranch", "s_branch", "s_waitcnt", "s_nop", "s_barrier", "s_setprio", "s_sleep", "s_endpgm", "s_bitcmp")):
            [i.s.update(r) for r in R]
        elif R: i.d = set(R[0]); [i.s.update(r) for r in R[1:]]
    i.ws = int(ops[0]) + 1 if op == "s_nop" else 1
    return i
def need(p, c):
    n = 0
    V = lambda S: {r for r in S if r[0] in "va"}
    Sg = lambda S: {r for r in S if r[0] == "s"}
    if p.valu:
        if Sg(p.d) & c.s:
            if c.valu: n = max(n, 4 if c.op.startswith(("v_readlane", "v_writelane")) else 2)
            if c.vmem: n = max(n, 5)
        if V(p.d) & c.s:
            if c.dpp or c.perm: n = max(n, 2)
            if c.mfma: n = max(n, 2)
            if c.op.startswith(("v_readfirstlane", "v_readlane")): n = max(n, 1)
            if p.op.startswith(TRANS) and (c.valu or c.mfma) : n = max(n, 1)
        if p.op.startswith(TRANS) and V(p.d) & c.s: n = max(n, 1)
    if p.mfma:
        big = "32x32" in p.op
        if c.mfma:
            if p.d & c.ab: n = max(n, 12 if big else 8)
            if p.d & c.c and not (p.d == c.c and ("32x32" in c.op) == big): n = max(n, 10 if big else 6)
            if p.d & c.d and not (p.d == c.c): n = max(n, 10 if big else 6)
        elif p.d & (c.s | c.d): n = max(n, 12 if big else 8)
        if c.valu and p.c & c.d: n = max(n, 7 if big else 3)
    if p.salu and ("s", "m0") in p.d and c.lds_dma: n = max(n, 1)
    if p.store and len(p.data) >= 3 and p.data & c.d: n = max(n, 2 if c.valu else 1)
    return n
def pad(lines, verbose=False):
    out = []; hist = []
    added = 0
    for ln in lines:
        c = parse(ln)
        if c is None: out.append(ln); continue
        dist = 0; req = 0
        for p in reversed(hist[-14:]):
            r = need(p, c) - dist
            if r > req: req = r; why = p
            dist += p.ws
            if dist >= 12: break
        if req > 0:
            if verbose: print(f"pad {req}: {why.op} {why.ops} -> {ln.strip()}")
            nl = f"    s_nop {req-1}"; out.append(nl); hist.append(parse(nl)); added += 1
        out.append(ln); hist.append(c)
    return out
```

```python
import sys
from asmlib import *
import hazard

WKV_N = 18*5*1024; WQ_N = 18*2*1024; W2_STEP = 4608; W2_N = 54*W2_STEP
A2H_T = 144*256; A2O_T = 16*1024 + 16*128
E_STR = 384; KVP_STR = 3200
_off = 0
def alloc(n, al=4096):
    global _off
    _off = (_off + al - 1)//al*al; r = _off; _off += n; return r
WS_WKV = alloc(16*WKV_N); WS_WQ = alloc(16*WQ_N); WS_W2 = alloc(8*W2_N)
WS_A2H = alloc(128*A2H_T); WS_A2O = alloc(128*A2O_T)
WS_E = alloc(256*E_STR); WS_KVP = alloc(256*KVP_STR); WS_G = alloc(2048*4)
WS_D0 = alloc(256*16); WS_FH = alloc(16*4*16*16); WS_FO = alloc(16*4*16*16)
WS_END = _off
WS_DBG = 32 << 20
WS_STAMP = 200 << 20
WS_SIZE = 268435456
OOB = 0x40000000

L_WKV = 0; L_WQ = 92160; L_MISC = 129024; L_CONST = 157696; L_END = 163840
SLOT = 25728; L_RING = L_CONST - 3*SLOT
L_PACK = 0
L_WRAW = 24576
L_EL = L_MISC; L_HT = L_MISC + 5120; HT_STR = 80; HT_W = 72*HT_STR
L_PK = 0; PK_STR = 288; PK_V = 192
L_WO = 0; L_SP = 82944; SP_W = 18688; SP_STR = 288
L_KVR = L_SP + 13824
L_WPF = L_CONST
L_LAM = L_WPF + 4608
L_FLG = L_LAM + 1280
L_OMG = L_LAM
assert L_FLG + 64 <= L_END and L_HT + 4*HT_W <= L_CONST and L_SP + 4*SP_W == L_CONST
SPIN_G = 300000; SPIN_L = 1500000
LOG2E = 0x3fb8aa3b

def magic(d, maxv, sh=16):
    m = -(-(1 << sh)//d)
    assert all((x*m) >> sh == x//d for x in range(maxv+1)), (d, maxv)
    return m
def vr(b, n=4): return f"v[{b}:{b+n-1}]"
def sr(b, n=4): return f"s[{b}:{b+n-1}]"

sWAVE, sW, sM, sN, sROT = 3, 4, 5, 6, 7
X_, WQKV_, WO_, CRE_, CIM_, OUT_, WS_, DBG_ = 8, 12, 16, 20, 24, 28, 36, 40
pLRE, pLIM, pBRE, pBIM, pLDT, pDSK, pWPH, pGAT = 44, 46, 48, 50, 52, 54, 56, 58
sM2, sN2 = 32, 33
sT = 60
QP = "quad_perm:[1,0,3,2] row_mask:0xf bank_mask:0xf"

class G(Asm):
    def __init__(s, opt):
        super().__init__(); s.opt = opt; s.nst = {"S": 1, "A": 1}; s.stn = {"S": ["start"], "A": ["start"]}
    def stamp(s, role, name=""):
        if not s.opt.get("stamps"): return
        i = s.nst[role]; s.nst[role] += 1; s.stn[role].append(name)
        assert i < 11
        s(f"s_memrealtime s[{76+2*i}:{77+2*i}]")
    def nop(s, n):
        while n > 0:
            k = min(n, 16); s(f"s_nop {k-1}"); n -= k
    def dump(s, regs, base, tmp):
        s("s_lshl_b32 s100, s2, 3", f"s_add_u32 s100, s100, s{sWAVE}", "s_lshl_b32 s100, s100, 16", f"s_add_u32 s100, s100, {WS_DBG + base*256}")
        s(f"v_mbcnt_lo_u32_b32 v{tmp}, -1, 0", f"v_mbcnt_hi_u32_b32 v{tmp}, -1, v{tmp}", f"v_lshlrev_b32 v{tmp}, 2, v{tmp}")
        s.nop(16)
        for k, r in enumerate(regs):
            s(f"buffer_store_dword v{r}, v{tmp}, {sr(WS_)}, s100 offen"); s("s_add_u32 s100, s100, 256")
        s("s_waitcnt vmcnt(0)")
    def mfma(s, d, a, b, c=None):
        cs = "0" if c is None else vr(c)
        s(f"v_mfma_f32_16x16x32_bf16 {vr(d)}, {vr(a)}, {vr(b)}, {cs}")
    def signal(s, role, epoch, va, vt):
        s(f"v_mov_b32 v{vt}, {epoch}", "s_mov_b64 exec, 1", f"ds_write_b32 v{va}, v{vt}", "s_mov_b64 exec, -1")
    def waitflags(s, role, epoch, vz, vt, which=None):
        o = 0 if role == "A" else 16
        lp = s.newlabel("Lw"); ex = s.newlabel("Lx")
        s(f"s_mov_b32 s{sT+11}, 0"); s.label(lp)
        if which is None:
            s(f"ds_read_b128 {vr(vt)}, v{vz} offset:{o}", f"s_add_u32 s{sT+11}, s{sT+11}, 1", "s_waitcnt lgkmcnt(0)")
            s(f"v_min_u32 v{vt}, v{vt}, v{vt+1}", f"v_min3_u32 v{vt}, v{vt}, v{vt+2}, v{vt+3}")
        else:
            s(f"ds_read_b32 v{vt}, v{which}", f"s_add_u32 s{sT+11}, s{sT+11}, 1", "s_waitcnt lgkmcnt(0)")
        s(f"v_cmp_gt_u32 vcc, {epoch}, v{vt}", f"s_cmp_gt_u32 s{sT+11}, {SPIN_L}", f"s_cbranch_scc1 {ex}", f"s_cbranch_vccnz {lp}")
        s.label(ex)

def prologue(a):
    a("s_cmp_ge_u32 s2, 256", "s_cbranch_scc1 L_end")
    if a.opt.get("stamps"): a("s_memrealtime s[76:77]")
    for reg, slot in ((X_, 0), (WS_, 16), (pBRE, 3), (pBIM, 4), (WQKV_, 10), (WO_, 12), (CRE_, 5), (CIM_, 6), (pGAT, 13), (DBG_, 15),
                      (pLRE, 1), (pLIM, 2), (pLDT, 7), (pWPH, 11), (pDSK, 8), (OUT_, 14)):
        a(f"s_load_dwordx2 s[{reg}:{reg+1}], s[0:1], {slot*8}")
    a("v_lshrrev_b32 v1, 6, v0", "v_and_b32 v0, 63, v0", f"v_readfirstlane_b32 s{sWAVE}, v1")
    a("s_and_b32 s60, s2, 7", "s_lshr_b32 s61, s2, 3")
    a("s_lshr_b32 s62, s60, 1", "s_lshl_b32 s62, s62, 2", "s_lshr_b32 s63, s61, 3", f"s_add_u32 s{sM}, s62, s63")
    a("s_and_b32 s62, s60, 1", "s_lshl_b32 s62, s62, 3", "s_and_b32 s64, s61, 7", f"s_add_u32 s{sN}, s62, s64")
    a("s_lshl_b32 s62, s63, 1", "s_add_u32 s62, s62, s64", "s_cmp_ge_u32 s62, 9", "s_cselect_b32 s65, 9, 0", f"s_sub_u32 s{sROT}, s62, s65")
    a("s_lshl_b32 s62, s60, 2", f"s_add_u32 s{sM2}, s62, s63", f"s_mov_b32 s{sN2}, s64")
    for b, n in ((X_, 2359296), (WQKV_, 1990656), (WO_, 663552), (CRE_, 663552), (CIM_, 663552), (OUT_, 4718592), (WS_, WS_SIZE), (DBG_, 256)):
        a(f"s_mov_b32 s{b+2}, {n}", f"s_mov_b32 s{b+3}, 0x20000")
    a(f"s_and_b32 s{sW}, s{sWAVE}, 3", f"s_cmp_ge_u32 s{sWAVE}, 4", "s_cbranch_scc1 L_A")

aX = 112
aACC = 72
aWB = 32
def A_code(a):
    o = a.opt
    a.label("L_A")
    vXO, vB0, vB1, vB2, vT = 2, 6, 8, 10, 12
    vXR = 14
    vFL, vMY = 18, 19
    vL16 = 20
    a("s_getpc_b64 s[62:63]"); a.label("L_pc")
    a(f"s_sub_u32 s62, s62, L_pc-{NAME}_kernel", "s_subb_u32 s63, s63, 0")
    a(f"v_lshlrev_b32 v{vL16}, 4, v0", "s_lshl_b32 s64, s61, 10", f"v_add_u32 v21, s64, v{vL16}")
    a(f"s_cmp_lg_u32 s{sW}, 3", "s_cbranch_scc1 L_nopf")
    a("global_load_dwordx4 v[24:27], v21, s[62:63]")
    a.label("L_nopf")
    a("v_lshrrev_b32 v21, 3, v0", "v_and_b32 v22, 7, v0", "v_lshrrev_b32 v23, 1, v21", "v_xor_b32 v23, v22, v23", "v_lshlrev_b32 v23, 4, v23")
    a(f"s_lshl_b32 s62, s{sM}, 7", f"s_lshl_b32 s63, s{sW}, 5", "s_add_u32 s62, s62, s63", "v_add_u32 v28, s62, v21", "v_mul_u32_u24 v28, 1152, v28")
    for i in range(4):
        ci = (((i >> 1) << 1) | ((i & 1) << 2)) << 4
        a(f"v_xor_b32 v29, {ci}, v23", f"v_add_u32 v29, {i*9216}, v29", f"v_add_u32 v{vXO+i}, v28, v29")
    a(f"s_mul_i32 s62, s{sN}, 36", f"s_lshl_b32 s63, s{sW}, 3", "s_add_u32 s63, s62, s63", "v_lshrrev_b32 v28, 1, v21", "v_add_u32 v28, s63, v28", "v_mul_u32_u24 v28, 1152, v28")
    a(f"s_and_b32 s64, s{sW}, 1", "s_lshl_b32 s64, s64, 5", "v_xor_b32 v29, s64, v23", f"v_add_u32 v{vB0}, v28, v29")
    a("v_xor_b32 v29, 64, v29", f"v_add_u32 v29, {4*1152}, v29", f"v_add_u32 v{vB1}, v28, v29")
    a("s_add_u32 s62, s62, 32", f"s_add_u32 s62, s62, s{sW}", "s_mul_i32 s62, s62, 1152", f"v_xor_b32 v28, s{sW}, v22", "v_lshlrev_b32 v28, 4, v28", "v_add_u32 v28, s62, v28")
    a("v_xor_b32 v29, 4, v22", "v_lshlrev_b32 v29, 4, v29", "v_cmp_eq_u32 s[66:67], 2, v21", "v_and_b32 v30, 1, v21", "v_cmp_eq_u32 vcc, 1, v30")
    a(f"v_cndmask_b32 v{vB2}, v28, v29, s[66:67]")
    a("s_mov_b32 s69, 0xffff", f"s_cmp_eq_u32 s{sW}, 3", "s_cselect_b32 s68, 0xffffff, s69", "s_mov_b32 s69, 0")
    a(f"s_lshl_b32 s70, s{sROT}, 7", "s_mov_b32 s71, 0")
    a(f"s_lshl_b32 s64, s{sW}, 12", f"s_lshl_b32 s65, s{sW}, 11", f"s_lshl_b32 s34, s{sW}, 8")
    a("s_waitcnt lgkmcnt(0)")
    if o.get("x_small"):
        for p in (pWPH, pGAT): a(f"s_mov_b64 s[{p}:{p+1}], s[{X_}:{X_+1}]")
    a(f"v_mov_b32 v28, s{pBRE}", f"v_mov_b32 v29, s{pBRE+1}", f"v_mov_b32 v30, s{pBIM}", f"v_mov_b32 v31, s{pBIM+1}")
    a("v_cndmask_b32 v28, v28, v30, vcc", "v_cndmask_b32 v29, v29, v31, vcc")
    a(f"v_mov_b32 v{vB0+1}, 0", f"v_mov_b32 v{vB1+1}, 0", f"v_mov_b32 v{vB2+1}, 0")
    a(f"v_lshl_add_u64 {vr(vB0,2)}, {vr(vB0,2)}, 0, v[28:29]", f"v_lshl_add_u64 {vr(vB1,2)}, {vr(vB1,2)}, 0, v[28:29]")
    a(f"v_mov_b32 v30, s{pGAT}", f"v_mov_b32 v31, s{pGAT+1}", "v_cndmask_b32 v28, v28, v30, s[66:67]", "v_cndmask_b32 v29, v29, v31, s[66:67]")
    a(f"v_lshl_add_u64 {vr(vB2,2)}, {vr(vB2,2)}, 0, v[28:29]")
    def slab_dma(j):
        base = L_RING + (j % 3)*SLOT
        for i in range(4):
            a(f"s_add_u32 m0, s64, {base + i*1024}", "s_nop 0", f"buffer_load_dwordx4 v{vXO+i}, {sr(X_)}, s70 offen lds")
        for b, vb in ((0, vB0), (1, vB1)):
            a(f"s_add_u32 m0, s65, {base + 16384 + b*1024}", f"v_lshl_add_u64 {vr(vT,2)}, s[70:71], 0, {vr(vb,2)}", f"global_load_lds_dwordx4 {vr(vT,2)}, off")
        a(f"s_add_u32 m0, s34, {base + 16384 + 8192}", f"v_lshl_add_u64 {vr(vT,2)}, s[70:71], 0, {vr(vB2,2)}", "s_mov_b64 exec, s[68:69]",
          f"global_load_lds_dwordx4 {vr(vT,2)}, off", "s_mov_b64 exec, -1")
        a("s_add_u32 s70, s70, 128", "s_cmp_ge_u32 s70, 1152", "s_cselect_b32 s62, 1152, 0", "s_sub_u32 s70, s70, s62")
    a(f"s_mul_i32 s62, s{sN}, 1296", f"v_add_u32 v28, s62, v{vL16}", f"s_add_u32 m0, s65, {L_WRAW}", "s_nop 0")
    a(f"global_load_lds_dwordx4 v28, s[{pWPH}:{pWPH+1}]")
    a("s_mov_b64 exec, 0x1ffff", f"global_load_lds_dwordx4 v28, s[{pWPH}:{pWPH+1}] offset:1024", "s_mov_b64 exec, -1")
    pass
    for j in range(3): slab_dma(j)
    pass
    a("v_and_b32 v21, 15, v0", "v_lshrrev_b32 v22, 4, v0", "v_lshrrev_b32 v23, 1, v21", "v_xor_b32 v23, v22, v23", "v_lshlrev_b32 v23, 4, v23")
    a(f"v_lshlrev_b32 v28, 7, v21", f"s_add_u32 s62, s64, {L_RING}", "v_add_u32 v28, s62, v28")
    for j in range(2):
        for s2 in range(2):
            a(f"v_xor_b32 v29, {(j << 5) ^ (s2 << 6)}, v23", f"v_add_u32 v29, {j*2048}, v29", f"v_add_u32 v{vXR+2*j+s2}, v28, v29")
    a(f"v_mov_b32 v{vFL}, {L_FLG}", f"s_lshl_b32 s62, s{sW}, 2", f"v_add_u32 v{vMY}, s62, v{vFL}")
    a("v_mov_b32 v28, 0", "s_mov_b64 exec, 1", f"ds_write_b32 v{vMY}, v28", f"ds_write_b32 v{vMY}, v28 offset:16", "s_mov_b64 exec, -1")
    a("v_lshrrev_b32 v23, 2, v21", "v_and_b32 v28, 1, v23", "v_mul_u32_u24 v28, 9, v28", "v_and_b32 v29, 3, v21", "v_add_u32 v28, v28, v29", "v_lshlrev_b32 v28, 1, v28")
    a(f"s_lshl_b32 s62, s{sW}, 3", "s_add_u32 s62, s62, s65", f"s_add_u32 s62, s62, {L_WRAW}", "v_add_u32 v28, s62, v28")
    a("v_mul_u32_u24 v29, 144, v22", "v_add_u32 v29, v28, v29")
    a("v_cmp_gt_u32 s[62:63], 8, v21", "v_cmp_eq_u32 s[66:67], 0, v22", "s_nop 0", "s_xnor_b64 s[66:67], s[62:63], s[66:67]")
    a("s_waitcnt vmcnt(21)")
    pass
    for j in range(8):
        F = j if j < 4 else 12 + j
        a(f"ds_read_u16 v{32+j}, v29 offset:{F*36}")
    for j in range(4): a(f"ds_read_u16 v{40+j}, v28 offset:{(32+j)*36}")
    a("s_waitcnt lgkmcnt(0)")
    for d in range(6): a(f"v_lshl_or_b32 v{44+d}, v{33+2*d}, 16, v{32+2*d}")
    a("v_cndmask_b32 v44, 0, v44, s[62:63]", "v_cndmask_b32 v45, 0, v45, s[62:63]", "v_cndmask_b32 v46, 0, v46, s[66:67]")
    for d in (47, 48, 49): a(f"v_cndmask_b32 v{d}, v{d}, 0, s[62:63]")
    a(f"s_cmp_eq_u32 s{sW}, 3", "s_cbranch_scc1 L_nowp")
    a(f"s_lshl_b32 s62, s{sW}, 10", f"s_add_u32 s62, s62, {L_WPF}", f"v_add_u32 v28, s62, v{vL16}", "ds_write_b128 v28, v[44:47]")
    a(f"s_lshl_b32 s62, s{sW}, 9", f"s_add_u32 s62, s62, {L_WPF+3072}", "v_lshlrev_b32 v28, 3, v0", "v_add_u32 v28, s62, v28", "ds_write_b64 v28, v[48:49]")
    a.label("L_nowp")
    a(f"s_mul_i32 s35, s{sROT}, 10", f"s_add_u32 s35, s35, s{sW}", "s_lshl_b32 s35, s35, 10")
    a(f"s_mul_i32 s62, s{sN}, {WKV_N}", f"s_add_u32 s62, s62, {WS_WKV}", f"v_add_u32 v30, s62, v{vL16}")
    a(f"s_mul_i32 s62, s{sN}, {WQ_N}", f"s_add_u32 s62, s62, {WS_WQ}", f"v_add_u32 v31, s62, v{vL16}")
    a(f"s_lshl_b32 s66, s{sW}, 10")
    kvq = {"i": 0}
    def kv_dma(cnt):
        for _ in range(cnt):
            q = kvq["i"]; kvq["i"] += 1
            if q == 22:
                a(f"s_cmp_lt_u32 s{sW}, 2", "s_cselect_b64 exec, -1, 1", f"s_cselect_b32 s62, s35, {OOB}", f"s_cselect_b32 s63, s66, {L_FLG+48-L_WKV-q*4096}")
                a(f"s_add_u32 m0, s63, {L_WKV + q*4096}", "s_nop 0", f"buffer_load_dwordx4 v30, {sr(WS_)}, s62 offen sc1 lds", "s_mov_b64 exec, -1")
            else:
                a(f"s_add_u32 m0, s66, {L_WKV + q*4096}", "s_nop 0", f"buffer_load_dwordx4 v30, {sr(WS_)}, s35 offen sc1 lds")
                a("s_add_u32 s35, s35, 4096", f"s_cmp_ge_u32 s35, {WKV_N}", f"s_cselect_b32 s62, {WKV_N}, 0", "s_sub_u32 s35, s35, s62")
    qq = {"i": 0}
    def q_dma(cnt):
        for _ in range(cnt):
            q = qq["i"]; qq["i"] += 1
            if q == 0: a(f"s_lshl_b32 s35, s{sROT}, 2", f"s_add_u32 s35, s35, s{sW}", "s_lshl_b32 s35, s35, 10")
            a(f"s_add_u32 m0, s66, {L_WQ + q*4096}", "s_nop 0", f"buffer_load_dwordx4 v31, {sr(WS_)}, s35 offen sc1 lds")
            a("s_add_u32 s35, s35, 4096", f"s_cmp_ge_u32 s35, {WQ_N}", f"s_cselect_b32 s62, {WQ_N}, 0", "s_sub_u32 s35, s35, s62")
    for j in range(9):
        younger = {0: 14, 8: 7}.get(j, 7)
        a(f"s_waitcnt vmcnt({younger}) lgkmcnt(0)")
        pass
        a("s_barrier")
        if j == 0: a.stamp("A", "slab0")
        for jj in range(2):
            for s2 in range(2):
                a(f"ds_read_b128 {vr(aX + ((2*j+s2)*2+jj)*4)}, v{vXR+2*jj+s2} offset:{(j%3)*SLOT}")
        if 1 <= j <= 6: slab_dma(j+2)
        if j == 7: kv_dma(7)
        if j == 8: kv_dma(6)
    a("s_waitcnt lgkmcnt(0)", "s_barrier")
    a.stamp("A", "st1end")
    if o.get("stop") == 1:
        a("s_waitcnt vmcnt(0)"); a.dump(range(aX, aX+144), 0, 1); a("s_branch L_fin")
        return
    a("s_setprio 1")
    a(f"v_add_u32 v21, {L_WKV + 10*5120}, v{vL16}")
    def kv_reads(s):
        for t in range(5):
            if s < 10: a(f"ds_read_b128 {vr(aWB + (s&1)*20 + t*4)}, v{vL16} offset:{L_WKV + s*5120 + t*1024}")
            else: a(f"ds_read_b128 {vr(aWB + (s&1)*20 + t*4)}, v21 offset:{(s-10)*5120 + t*1024}")
    def issued(): return kvq["i"] + qq["i"]
    kv_dma(5)
    a(f"s_waitcnt vmcnt({issued()-7})"); a.signal("A", 1, vMY, 22); a.waitflags("A", 1, vFL, 24)
    pass
    kv_reads(0)
    bend = {5: (2, 13), 10: (3, 18), 14: (4, 23)}
    for s in range(18):
        if s+2 in bend:
            ep, n = bend[s+2]; a(f"s_waitcnt vmcnt({issued()-n})"); a.signal("A", ep, vMY, 22)
        if s+1 in bend:
            a.waitflags("A", bend[s+1][0], vFL, 24)
        if s+1 < 18: kv_reads(s+1); a("s_waitcnt lgkmcnt(5)")
        else: a("s_waitcnt lgkmcnt(0)")
        for t in range(5):
            for jj in range(2):
                d = aACC + (t*2+jj)*4
                a.mfma(d, aWB + (s&1)*20 + t*4, aX + (s*2+jj)*4, None if s == 0 else d)
            if t in (1, 3):
                if kvq["i"] < 23: kv_dma(1)
                elif qq["i"] < 9: q_dma(1)
    assert kvq["i"] == 23 and qq["i"] == 9
    a.stamp("A", "kvgemm")
    if o.get("stop") == 2:
        a("s_waitcnt vmcnt(0)"); a.dump(range(aACC, aACC+40), 0, 1); a("s_branch L_fin")
        return

    vMX = 2; vPKW = 6; vKA = 7; vKB = 10; vKS = 11; vG = 12; vI = 13
    a(f"v_and_b32 v{vI}, 15, v0", f"v_lshrrev_b32 v{vG}, 4, v0")
    a(f"v_add_u32 v22, {L_WPF}, v{vL16}", "v_lshlrev_b32 v23, 3, v0", f"v_add_u32 v23, {L_WPF+3072}, v23")
    def wphi_reads():
        for t in range(3): a(f"ds_read_b128 {vr(32+4*t)}, v22 offset:{t*1024}")
        for t in range(3): a(f"ds_read_b64 {vr(44+2*t,2)}, v23 offset:{t*512}")
    wphi_reads()
    a(f"s_mul_i32 s62, s{sW}, {32*PK_STR}", f"v_mul_u32_u24 v{vPKW}, {PK_STR}, v{vI}", f"v_add_u32 v{vPKW}, s62, v{vPKW}")
    a(f"v_lshl_add_u32 v24, v{vG}, 3, v{vPKW}")
    a(f"v_mul_u32_u24 v25, 40, v{vG}", f"v_add_u32 v25, v25, v{vPKW}")
    a(f"v_mul_u32_u24 v26, 48, v{vG}", f"v_add_u32 v{vPKW}, v26, v{vPKW}")
    a(f"v_cmp_eq_u32 s[64:65], 1, v{vG}", f"v_cmp_eq_u32 s[66:67], 0, v{vG}")
    a(f"s_mov_b32 s68, {LOG2E}", f"s_mov_b32 s69, {LOG2E | 0x80000000}")
    def cvt2(d, src): a(f"v_cvt_pk_bf16_f32 v{d}, v{src}, v{src+1}", f"v_cvt_pk_bf16_f32 v{d+1}, v{src+2}, v{src+3}")
    for j in range(2):
        cvt2(50+4*j, aACC + (0*2+j)*4); cvt2(52+4*j, aACC + (1*2+j)*4); cvt2(vMX+2*j, aACC + (4*2+j)*4)
    for j in range(2):
        cvt2(62+4*j, aACC + (2*2+j)*4); cvt2(64+4*j, aACC + (3*2+j)*4)
    def phi(mask):
        for j in range(2):
            for k in range(2): a(f"v_cndmask_b32 v{58+2*j+k}, 0, v{vMX+2*j+k}, {mask}")
        a("s_waitcnt lgkmcnt(0)")
        P = lambda t, j: 72 + j*12 + t*4
        for j in range(2):
            for t in range(3): a.mfma(P(t, j), 32+4*t, 50+4*j)
        for j in range(2):
            for t in range(3): a(f"v_mfma_f32_16x16x16_bf16 {vr(P(t,j))}, {vr(44+2*t,2)}, {vr(58+2*j,2)}, {vr(P(t,j))}")
        st = lambda j: 96 + 8*j
        if o.get("rndp"):
            for j in range(2):
                b = 72 + 12*j
                for k in range(0, 8, 2): a(f"v_cvt_pk_bf16_f32 v{b+k+1}, v{b+k}, v{b+k+1}")
                a(f"v_cvt_pk_bf16_f32 v{b+8}, v{b+8}, v{b+8}")
            for j in range(2):
                b = 72 + 12*j
                for k in range(0, 8, 2): a(f"v_lshlrev_b32 v{b+k}, 16, v{b+k+1}", f"v_and_b32 v{b+k+1}, 0xffff0000, v{b+k+1}")
                a(f"v_and_b32 v{b+8}, 0xffff0000, v{b+8}")
        for k in range(4):
            for j in range(2):
                b = 72 + 12*j
                for op, r in (("max", st(j)), ("min", st(j)+1)):
                    if k == 0: a(f"v_{op}3_f32 v{r}, v{b}, v{b+1}, v{b+2}")
                    else: a(f"v_{op}3_f32 v{r}, v{r}, v{b+1+2*k}, v{b+2+2*k}")
        for j in range(2): a(f"v_mov_b32 v{st(j)+2}, v{st(j)}", f"v_mov_b32 v{st(j)+3}, v{st(j)+1}")
        for j in range(2): a(f"v_permlane16_swap_b32 v{st(j)}, v{st(j)+2}", f"v_permlane16_swap_b32 v{st(j)+1}, v{st(j)+3}")
        for j in range(2): a(f"v_max_f32 v{st(j)}, v{st(j)}, v{st(j)+2}", f"v_min_f32 v{st(j)+1}, v{st(j)+1}, v{st(j)+3}")
        for j in range(2): a(f"v_pk_mul_f32 {vr(st(j)+4,2)}, {vr(st(j),2)}, s[68:69] op_sel:[0,1] op_sel_hi:[1,0]")
        E = lambda i, j: 32 + 18*j + 2*i
        for i in range(9):
            for j in range(2):
                p = 72 + 12*j + i; h = p & 1
                a(f"v_pk_fma_f32 {vr(E(i,j),2)}, {vr(p & ~1,2)}, s[68:69], {vr(st(j)+4,2)} op_sel:[{h},0,0] op_sel_hi:[{h},1,1]")
        for i in range(9):
            for j in range(2): a(f"v_exp_f32 v{E(i,j)}, v{E(i,j)}", f"v_exp_f32 v{E(i,j)+1}, v{E(i,j)+1}")
            if i >= 2:
                for j in range(2):
                    if i == 2: a(f"v_pk_add_f32 {vr(st(j),2)}, {vr(E(0,j),2)}, {vr(E(1,j),2)}")
                    else: a(f"v_pk_add_f32 {vr(st(j),2)}, {vr(st(j),2)}, {vr(E(i-1,j),2)}")
        for j in range(2): a(f"v_pk_add_f32 {vr(st(j),2)}, {vr(st(j),2)}, {vr(E(8,j),2)}")
        for j in range(2): a(f"v_mov_b32 v{st(j)+2}, v{st(j)}", f"v_mov_b32 v{st(j)+3}, v{st(j)+1}")
        for j in range(2): a(f"v_permlane16_swap_b32 v{st(j)}, v{st(j)+2}", f"v_permlane16_swap_b32 v{st(j)+1}, v{st(j)+3}")
        for j in range(2): a(f"v_pk_add_f32 {vr(st(j),2)}, {vr(st(j),2)}, {vr(st(j)+2,2)}")
        for j in range(2): a(f"v_rcp_f32 v{st(j)}, v{st(j)}", f"v_rcp_f32 v{st(j)+1}, v{st(j)+1}")
        for j in range(2):
            for k in (9, 10, 11): a(f"v_mov_b32 v{72+12*j+k}, 0")
        for i in range(9):
            for j in range(2): a(f"v_pk_mul_f32 {vr(E(i,j),2)}, {vr(E(i,j),2)}, {vr(st(j),2)}")
        for i in range(9):
            for j in range(2): a(f"v_cvt_pk_bf16_f32 v{72+12*j+i}, v{E(i,j)}, v{E(i,j)+1}")
    a("v_mov_b32 v71, 0x3f80")
    for j in range(2):
        a(f"ds_write_b64 v24, {vr(62+4*j,2)} offset:{L_PK + j*16*PK_STR + PK_V}", f"ds_write_b64 v24, {vr(64+4*j,2)} offset:{L_PK + j*16*PK_STR + PK_V + 40}")
    a("s_mov_b32 exec_lo, 0")
    for j in range(2):
        a(f"ds_write_b32 v25, v{vMX+2*j} offset:{L_PK + j*16*PK_STR + PK_V + 32 - 80}", f"ds_write_b32 v25, v71 offset:{L_PK + j*16*PK_STR + PK_V + 36 - 80}")
    a("s_mov_b64 exec, -1")
    phi("s[64:65]")
    for j in range(2):
        b = 72 + 12*j; of = L_PK + j*16*PK_STR
        a(f"ds_write_b128 v{vPKW}, {vr(b)} offset:{of}", f"ds_write_b128 v{vPKW}, {vr(b+4)} offset:{of+16}", f"ds_write_b64 v{vPKW}, {vr(b+8,2)} offset:{of+32}")
    a(f"v_lshrrev_b32 v24, 2, v0", f"v_mul_u32_u24 v24, {PK_STR}, v24", f"v_and_b32 v25, 3, v0")
    a(f"s_lshr_b32 s62, s{sW}, 1", f"s_and_b32 s63, s{sW}, 1", "s_mul_i32 s70, s62, 96")
    for t in range(3):
        a(f"v_add_u32 v26, {4*t}, v25", "v_min_u32 v26, 9, v26", "v_cmp_lt_u32 vcc, 4, v26", "v_lshlrev_b32 v26, 3, v26", "v_cndmask_b32 v27, 0, 8, vcc", f"v_add3_u32 v26, v26, v27, s70", f"v_add_u32 v{vKA+t}, v24, v26")
    a("s_mul_i32 s70, s62, 40", f"s_add_u32 s70, s70, {PK_V}", "v_lshlrev_b32 v26, 3, v25", "s_cmp_eq_u32 s63, 0", "s_cselect_b64 vcc, -1, 0", "v_cndmask_b32 v26, 32, v26, vcc", f"v_add3_u32 v{vKB}, v24, v26, s70")
    a(f"v_lshlrev_b32 v26, 3, v0", f"v_lshlrev_b32 v27, 5, v{vG}", f"v_lshl_add_u32 v27, v{vI}, 3, v27", f"v_cmp_gt_u32 s[70:71], 4, v{vI}", f"v_mov_b32 v28, {OOB}", "v_cndmask_b32 v27, v28, v27, s[70:71]", f"v_cndmask_b32 v{vKS}, v27, v26, vcc")
    a("s_mul_i32 s70, s62, 1280", "s_mul_i32 s71, s62, 320", "s_add_u32 s71, s71, 2560", "s_cmp_eq_u32 s63, 0", "s_cselect_b32 s70, s70, s71", "s_movk_i32 s71, 128", "s_cselect_b32 s71, 512, s71")
    a(f"s_lshl_b32 s62, s{sN}, 4", f"s_add_u32 s62, s62, s{sM}", f"s_mul_i32 s62, s62, {KVP_STR}", f"s_add_u32 s62, s62, {WS_KVP}", "s_add_u32 s70, s70, s62")
    a("s_mov_b32 s34, s70", "s_mov_b32 s35, s71")
    a("s_waitcnt vmcnt(0) lgkmcnt(0)"); a.signal("A", 5, vMY, 22+6); a.waitflags("A", 5, vFL, 24)
    a.stamp("A", "phik")
    for ks in range(4):
        for t in range(4):
            ad = vKA + t
            for h in range(2): a(f"ds_read_b64_tr_b16 {vr(32 + ks*16 + t*4 + 2*h, 2)}, v{ad} offset:{L_PK + (32*ks+16*h)*PK_STR}")
    for ks in range(4):
        a(f"s_waitcnt lgkmcnt({min(15, 24-8*ks)})") if ks >= 2 or True else None
        if ks == 0: a("s_waitcnt lgkmcnt(15)")
        for t in range(3): a.mfma(96+4*t, 32+ks*16+t*4, 32+ks*16+12, None if ks == 0 else 96+4*t)
    a.signal("A", 6, vMY, 28)
    a(f"v_add_u32 v21, {L_WQ}, v{vL16}")
    def q_reads(s):
        for t in range(2): a(f"ds_read_b128 {vr(32 + (s%3)*8 + t*4)}, v21 offset:{s*2048 + t*1024}")
    for t in range(3): cvt2(56+2*t, 96+4*t)
    q_reads(0); q_reads(1)
    for t in range(3):
        if t == 2: a("s_mov_b32 exec_hi, 0")
        a(f"buffer_store_dwordx2 {vr(56+2*t,2)}, v{vKS}, {sr(WS_)}, s34 offen sc1", "s_add_u32 s34, s34, s35")
    a("s_mov_b64 exec, -1")
    a.stamp("A", "kvpub")
    for s in range(18):
        if s+2 < 18: q_reads(s+2); a("s_waitcnt lgkmcnt(4)")
        else: a(f"s_waitcnt lgkmcnt({2*(17-s)})")
        for t in range(2):
            for jj in range(2):
                d = aACC + (t*2+jj)*4
                a.mfma(d, 32 + (s%3)*8 + t*4, aX + (s*2+jj)*4, None if s == 0 else d)
    a.signal("A", 7, vMY, 28)
    wphi_reads()
    a(f"v_mul_u32_u24 v24, {KVP_STR}, v{vG}", f"v_lshl_add_u32 v24, v{vI}, 4, v24")
    a(f"s_mul_i32 s62, s{sN}, {16*KVP_STR}", f"s_lshl_b32 s63, s{sW}, 10", "s_add_u32 s62, s62, s63", f"s_add_u32 s62, s62, {WS_KVP}", "v_add_u32 v24, s62, v24")
    a(f"v_mov_b32 v28, {OOB}", f"s_cmp_eq_u32 s{sW}, 3", "s_cselect_b64 vcc, -1, 0", "v_cndmask_b32 v25, v24, v28, vcc", f"v_cmp_lt_u32 s[62:63], 7, v{vI}", "s_nop 1", "s_and_b64 vcc, vcc, s[62:63]", "v_cndmask_b32 v24, v24, v28, vcc")
    def gather():
        for mq in range(4):
            a(f"s_mov_b32 s62, {mq*4*KVP_STR}")
            for b in range(4): a(f"buffer_load_dwordx4 {vr(112 + (mq*4+b)*4)}, v{24 if b == 0 else 25}, {sr(WS_)}, s62 offen offset:{b*256} sc1")
    gather()
    for j in range(2):
        cvt2(50+4*j, aACC + (0*2+j)*4); cvt2(52+4*j, aACC + (1*2+j)*4)
    phi("s[66:67]")
    a.stamp("A", "phiq")
    a("v_mov_b32 v71, 0x3f80", f"v_and_b32 v26, 1, v{vI}", "v_lshlrev_b32 v26, 4, v26", "v_lshlrev_b32 v26, v26, v71", f"v_lshrrev_b32 v27, 1, v{vI}")
    for k in range(8): a(f"v_cmp_eq_u32 vcc, {k}, v27", f"v_cndmask_b32 v{32+k}, 0, v26, vcc")
    a.waitflags("A", 7, vFL, 28)
    a("s_mov_b32 s70, 0"); a.label("L_kvr")
    for mq in range(4):
        for b in range(4):
            a(f"s_waitcnt vmcnt({15 - mq*4 - b})")
            d = 40 + (b >> 1)*4
            a.mfma(d, 32 + (b & 1)*4, 112 + (mq*4+b)*4, None if (mq == 0 and (b & 1) == 0) else d)
    a("s_add_u32 s70, s70, 1")
    a("v_add_f32 v48, v40, v44", "v_cmp_u_f32 vcc, v48, v48", f"s_cmp_gt_u32 s70, {SPIN_G//16}", "s_cbranch_scc1 L_kvrx", "s_cbranch_vccz L_kvrx")
    gather(); a("s_branch L_kvr"); a.label("L_kvrx")
    a.stamp("A", "kvred")
    cvt2(48, 40); cvt2(50, 44)
    a(f"v_lshrrev_b32 v26, 1, v{vG}", "v_lshlrev_b32 v26, 8, v26", f"v_lshl_add_u32 v26, v{vI}, 4, v26", f"v_and_b32 v27, 1, v{vG}", "v_lshl_add_u32 v26, v27, 3, v26",
      f"s_lshl_b32 s62, s{sW}, 10", f"s_add_u32 s62, s62, {L_KVR}", "v_add_u32 v26, s62, v26")
    a("ds_write_b64 v26, v[48:49]", "ds_write_b64 v26, v[50:51] offset:512")
    a(f"v_lshrrev_b32 v28, 1, v{vG}", f"v_lshrrev_b32 v29, 3, v{vI}", "v_cmp_eq_u32 vcc, v28, v29", f"v_and_b32 v29, 3, v{vI}", f"v_bfe_u32 v30, v{vI}, 2, 1")
    a(f"v_mul_u32_u24 v31, 640, v{vG}", "v_lshl_add_u32 v31, v30, 6, v31", "v_lshl_add_u32 v31, v29, 3, v31", "v_mov_b32 v28, 3200", "v_cndmask_b32 v31, v28, v31, vcc", f"v_add_u32 v31, {L_KVR}, v31")
    a(f"v_mul_u32_u24 v30, 160, v{vG}", "v_lshl_add_u32 v30, v29, 3, v30", "v_add_u32 v30, 2560, v30", "v_cndmask_b32 v30, v28, v30, vcc", f"v_add_u32 v30, {L_KVR}, v30")
    a("s_waitcnt lgkmcnt(0)"); a.signal("A", 8, vMY, 28); a.waitflags("A", 8, vFL, 24)
    for sst in range(3):
        for T in range(3):
            d = vr(32 + (sst*3+T)*4)
            if T < 2: a(f"ds_read2_b64 {d}, v31 offset0:{sst*32 + 4*T} offset1:{sst*32 + 16 + 4*T}")
            else: a(f"ds_read2_b64 {d}, v30 offset0:{sst*8} offset1:{sst*8 + 4}")
    O = lambda T, j: 112 + (j*3+T)*4
    for sst in range(3):
        a(f"s_waitcnt lgkmcnt({6-3*sst})")
        for j in range(2):
            for T in range(3): a.mfma(O(T, j), 32 + (sst*3+T)*4, 72 + 12*j + 4*sst, None if sst == 0 else O(T, j))
    a.signal("A", 9, vMY, 28)
    a(f"s_lshl_b32 s62, s{sM}, 3", f"s_lshl_b32 s63, s{sW}, 1", "s_add_u32 s62, s62, s63", f"s_mul_i32 s62, s62, {A2O_T}", f"s_add_u32 s62, s62, {WS_A2O}")
    a(f"s_lshl_b32 s63, s{sN}, 10", "s_add_u32 s63, s63, s62", f"s_add_u32 s70, s63, {A2O_T}", f"s_lshl_b32 s71, s{sN}, 7", "s_add_u32 s71, s71, s62", "s_add_u32 s71, s71, 16384")
    a("v_lshrrev_b32 v26, 5, v0", f"v_mul_u32_u24 v26, {A2O_T}, v26", f"v_lshl_add_u32 v26, v{vI}, 3, v26")
    for j in range(2): a(f"v_add_f32 v{O(2,j)+2}, 0x358637bd, v{O(2,j)+2}")
    for j in range(2): a(f"v_rcp_f32 v{O(2,j)+2}, v{O(2,j)+2}")
    for j in range(2):
        for k in range(5): a(f"v_pk_mul_f32 {vr(O(0,j)+2*k,2)}, {vr(O(0,j)+2*k,2)}, {vr(O(2,j)+2,2)} op_sel_hi:[1,0]")
    for j in range(2):
        cvt2(32+4*j, O(0, j)); cvt2(34+4*j, O(1, j)); a(f"v_cvt_pk_bf16_f32 v{40+j}, v{O(2,j)}, v{O(2,j)+1}")
    a(f"buffer_store_dwordx4 v[32:35], v{vL16}, {sr(WS_)}, s63 offen sc1", f"buffer_store_dwordx4 v[36:39], v{vL16}, {sr(WS_)}, s70 offen sc1")
    a("v_permlane32_swap_b32 v40, v41", "s_mov_b32 exec_lo, 0xffff", "s_mov_b32 exec_hi, 0xffff", f"buffer_store_dwordx2 v[40:41], v26, {sr(WS_)}, s71 offen sc1")
    a(f"s_lshl_b32 s62, s{sM}, 2", f"s_add_u32 s62, s62, s{sW}", "s_lshl_b32 s62, s62, 4", f"s_add_u32 s62, s62, s{sN}", "s_lshl_b32 s62, s62, 4", f"s_add_u32 s62, s62, {WS_FO}")
    a("s_mov_b64 exec, 1", "v_mov_b32 v28, 1", "v_mov_b32 v29, 0", "s_waitcnt vmcnt(0)", f"buffer_store_dword v28, v29, {sr(WS_)}, s62 offen sc1", "s_mov_b64 exec, -1")
    a.stamp("A", "opub")
    a(f"s_lshl_b32 s64, s{sM2}, 2", f"s_add_u32 s64, s64, s{sW}")
    a("s_lshr_b32 s62, s64, 1", "s_lshl_b32 s62, s62, 8", f"s_add_u32 s62, s62, {WS_FO}")
    a(f"s_mul_i32 s64, s64, {A2O_T}", f"s_add_u32 s64, s64, {WS_A2O}", "v_lshlrev_b32 v26, 3, v0")
    a(f"v_lshlrev_b32 v24, 7, v{vG}", "v_and_b32 v25, 7, v0", "v_lshl_add_u32 v24, v25, 4, v24", f"v_add_u32 v24, {L_WO+4096}, v24")
    a(f"v_add_u32 v22, {L_WO + 9*W2_STEP}, v{vL16}", f"v_add_u32 v25, {9*W2_STEP}, v24")
    a("s_mov_b32 s70, 0", "s_mov_b64 exec, 0xffff"); a.label("L_fo")
    a(f"buffer_load_dword v28, v{vL16}, {sr(WS_)}, s62 offen sc1", "s_add_u32 s70, s70, 1", "s_waitcnt vmcnt(0)", "v_cmp_ne_u32 vcc, 1, v28",
      f"s_cmp_gt_u32 s70, {SPIN_G}", "s_cbranch_scc1 L_fox", "s_cbranch_vccnz L_fo"); a.label("L_fox")
    a("s_mov_b64 exec, -1")
    a.stamp("A", "oseen")
    for st_ in range(16):
        if st_ % 4 == 0 and st_: a("s_add_u32 s64, s64, 4096")
        a(f"buffer_load_dwordx4 {vr(112+4*st_)}, v{vL16}, {sr(WS_)}, s64 offen offset:{(st_%4)*1024} sc1")
    a("s_add_u32 s64, s64, 4096")
    for k in range(4): a(f"buffer_load_dwordx2 {vr(176+2*k,2)}, v26, {sr(WS_)}, s64 offen offset:{k*512} sc1")
    a.waitflags("S", 4, vFL, 28)
    def wo_reads(s):
        b0, b1, of = (vL16, 24, L_WO + s*W2_STEP) if s < 9 else (22, 25, (s-9)*W2_STEP)
        for t in range(4): a(f"ds_read_b128 {vr(32 + (s&1)*20 + t*4)}, v{b0} offset:{of + t*1024}")
        a(f"ds_read_b128 {vr(32 + (s&1)*20 + 16)}, v{b1} offset:{(s if s < 9 else s-9)*W2_STEP}")
    wo_reads(0)
    for s in range(18):
        if s+1 < 18: wo_reads(s+1)
        vm = 19 - s if s < 16 else (2 if s == 16 else 0)
        a(f"s_waitcnt vmcnt({vm}) lgkmcnt({5 if s+1 < 18 else 0})")
        for t in range(5): a.mfma(72+4*t, 32 + (s&1)*20 + t*4, 112+4*s, None if s == 0 else 72+4*t)
    a(f"v_mul_u32_u24 v26, {magic(18,63)}, v0", "v_lshrrev_b32 v26, 16, v26", "v_mul_u32_u24 v27, 18, v26", "v_sub_u32 v27, v0, v27")
    a(f"s_mul_i32 s62, s{sW}, {16*SP_STR}", f"s_add_u32 s62, s62, {L_SP}", f"v_add_u32 v28, s62, v{vL16}")
    a(f"v_mul_u32_u24 v29, {SP_STR}, v{vI}", f"v_lshl_add_u32 v29, v{vG}, 4, v29", "v_add_u32 v29, s62, v29")
    a(f"s_lshl_b32 s63, s{sW}, 6", f"s_add_u32 s63, s63, {L_OMG}", "v_lshl_add_u32 v30, v26, 2, s63")
    a(f"v_add_u32 v31, 16, v{vMY}")
    a.waitflags("S", 6, vFL, 24, which=31)
    for k in range(6): a(f"ds_read_b128 {vr(112+4*k)}, v28 offset:{k*864}", f"ds_read_b32 v{136+2*k}, v30 offset:{k*12}")
    for t in range(5):
        if t == 4: a("s_mov_b32 exec_hi, 0")
        a(f"ds_write_b128 v29, {vr(72+4*t)} offset:{SP_W + t*64}")
    a("s_mov_b64 exec, -1")
    a(f"s_lshl_b32 s62, s{sM2}, 2", f"s_add_u32 s62, s62, s{sW}", f"s_mul_i32 s62, s62, {16*2304}", f"s_mul_i32 s63, s{sN2}, 288", "s_add_u32 s62, s62, s63")
    a("v_mul_u32_u24 v26, 2304, v26", "v_lshl_add_u32 v26, v27, 4, v26")
    a("s_waitcnt lgkmcnt(0)")
    for k in range(6): a(f"ds_read_b128 {vr(32+4*k)}, v28 offset:{SP_W + k*864}")
    a("s_mov_b32 exec_hi, 0x3fffff")
    for k in range(6):
        a(f"s_waitcnt lgkmcnt({5-k})")
        for h in range(2): a(f"v_pk_fma_f32 {vr(32+4*k+2*h,2)}, {vr(32+4*k+2*h,2)}, {vr(136+2*k,2)}, {vr(112+4*k+2*h,2)} op_sel_hi:[1,0,1]")
        if k == 5: a("s_mov_b64 exec, 0x3ffff")
        a(f"buffer_store_dwordx4 {vr(32+4*k)}, v26, {sr(OUT_)}, s62 offen", f"s_add_u32 s62, s62, {3*2304}")
    a("s_mov_b64 exec, -1")
    a("s_branch L_fin")

sU = 8
sFB = 48
def S_code(a):
    o = a.opt
    vL16 = 1; vXR = 104; vWR = 108; vFL = 2; vMY = 3
    a(f"v_lshlrev_b32 v{vL16}, 4, v0")
    a(f"s_lshl_b32 s60, s{sW}, 8", "s_add_u32 s60, s60, s2")
    a("v_lshrrev_b32 v4, 3, v0", "v_and_b32 v5, 7, v0", "v_lshlrev_b32 v5, 4, v5")
    m27 = magic(27, 2047); m9 = magic(9, 1023)
    a("v_mul_u32_u24 v6, 3456, v4", "v_add_u32 v6, v6, v5")
    for k in range(2):
        kb, cb, so = 62+3*k, 63+3*k, 64+3*k
        a(f"s_add_u32 s61, s60, {1024*k}", f"s_mul_i32 s{kb}, s61, {m27}", f"s_lshr_b32 s{kb}, s{kb}, 16", f"s_mul_i32 s{cb}, s{kb}, 27", f"s_sub_u32 s{cb}, s61, s{cb}")
        a(f"s_mul_i32 s{so}, s{kb}, {8*3456}", f"s_lshl_b32 s61, s{cb}, 7", f"s_add_u32 s{so}, s{so}, s61")
    a(f"s_mul_i32 s68, s60, {m9}", "s_lshr_b32 s68, s68, 16", "s_mul_i32 s69, s68, 9", "s_sub_u32 s69, s60, s69")
    a("s_lshr_b32 s61, s68, 1", "s_mul_i32 s61, s61, 18", "s_and_b32 s70, s68, 1", "s_lshl_b32 s70, s70, 3", "s_add_u32 s61, s61, s70", "v_add_u32 v7, s61, v4")
    a("s_sub_u32 s61, s68, 64", "s_lshr_b32 s70, s61, 2", "s_lshl_b32 s70, s70, 3", "s_and_b32 s61, s61, 3", "s_add_u32 s61, s61, s70", "s_mul_i32 s61, s61, 36", "s_add_u32 s61, s61, 16")
    a("v_lshrrev_b32 v8, 2, v4", "v_mul_u32_u24 v8, 144, v8", "v_bfe_u32 v9, v4, 1, 1", "v_mul_u32_u24 v9, 18, v9", "v_and_b32 v10, 1, v4", "v_add3_u32 v8, v8, v9, v10", "v_add_u32 v8, s61, v8")
    a("s_cmp_lt_u32 s68, 64", "s_cselect_b64 vcc, -1, 0", "v_cndmask_b32 v7, v8, v7, vcc", "v_mul_u32_u24 v7, 1152, v7", "v_add_u32 v7, v7, v5")
    a("s_lshl_b32 s70, s69, 7", "s_cmp_lt_u32 s60, 648", f"s_cselect_b32 s70, s70, {OOB}")
    a("s_sub_u32 s61, 1023, s60", f"s_mul_i32 s34, s61, {m9}", "s_lshr_b32 s34, s34, 16", "s_mul_i32 s35, s34, 9", "s_sub_u32 s35, s61, s35")
    a("s_mul_i32 s71, s34, 9216", "s_lshl_b32 s61, s35, 7", "s_add_u32 s71, s71, s61")
    a("v_mul_u32_u24 v8, 1152, v4", "v_add_u32 v8, v8, v5")
    a(f"s_mul_i32 s72, s{sW}, 5120")
    a("s_waitcnt lgkmcnt(0)")
    if o.get("x_small"):
        for p in (pLRE, pLIM, pLDT): a(f"s_mov_b64 s[{p}:{p+1}], s[{X_}:{X_+1}]")
    if o.get("x_pack"):
        for p in (WQKV_, WO_, CRE_, CIM_): a(f"s_mov_b64 s[{p}:{p+1}], s[{X_}:{X_+1}]")
    a("s_cmp_lg_u32 s60, 768", "s_cbranch_scc1 L_nolead")
    a("v_mov_b32 v12, 0", "v_mov_b32 v13, 0", "v_mov_b32 v14, 0", "v_mov_b32 v15, 0", f"s_mov_b32 s61, {WS_D0}")
    for k in range(4): a(f"buffer_store_dwordx4 v[12:15], v{vL16}, {sr(WS_)}, s61 offen offset:{k*1024} sc1")
    a("v_mov_b32 v13, 1", "s_waitcnt vmcnt(0)", "s_mov_b64 exec, 1", f"buffer_store_dword v13, v12, {sr(DBG_)}, 0 offen sc1", "s_mov_b64 exec, -1")
    a.label("L_nolead")
    if o.get("nost"): a(f"s_mov_b32 s{WS_+2}, 0")
    for k, (vo, srd, so) in enumerate(((6, WQKV_, 64), (6, WQKV_, 67), (7, WO_, 70), (8, CRE_, 71), (8, CIM_, 71))):
        a(f"s_add_u32 m0, s72, {L_PACK + k*1024}", "s_nop 0", f"buffer_load_dwordx4 v{vo}, {sr(srd)}, s{so} offen lds")
    a(f"s_mul_i32 s61, s{sN}, 72", "v_min_u32 v9, 35, v0", "v_lshlrev_b32 v9, 1, v9", "v_add_u32 v9, s61, v9")
    a(f"global_load_ushort v112, v9, s[{pLRE}:{pLRE+1}]", f"global_load_ushort v113, v9, s[{pLIM}:{pLIM+1}]", f"global_load_ushort v114, v9, s[{pLDT}:{pLDT+1}]")
    a("v_mov_b32 v12, -1", "v_mov_b32 v13, -1", "v_mov_b32 v14, -1", "v_mov_b32 v15, -1", "v_mov_b32 v16, 0")
    a(f"s_lshl_b32 s73, s{sN}, 4", f"s_add_u32 s73, s73, s{sM}")
    a(f"s_mul_i32 s61, s73, {KVP_STR}", f"s_lshl_b32 s74, s{sW}, 10", "s_add_u32 s61, s61, s74", f"s_add_u32 s61, s61, {WS_KVP}")
    a(f"s_cmp_eq_u32 s{sW}, 3", "s_cselect_b64 exec, 0xff, -1", f"buffer_store_dwordx4 v[12:15], v{vL16}, {sr(WS_)}, s61 offen sc1")
    a(f"s_mul_i32 s61, s73, {E_STR}", f"s_add_u32 s61, s61, {WS_E}", f"s_cmp_eq_u32 s{sW}, 3", f"s_cselect_b32 s61, s61, {OOB}")
    a("s_mov_b64 exec, 0x3ffff", f"buffer_store_dwordx4 v[12:15], v{vL16}, {sr(WS_)}, s61 offen sc1")
    a(f"s_lshl_b32 s75, s{sM}, 2", f"s_add_u32 s75, s75, s{sW}", "s_lshl_b32 s75, s75, 4", f"s_add_u32 s75, s75, s{sN}", "s_lshl_b32 s75, s75, 4")
    a(f"v_mul_u32_u24 v17, {WS_FO - WS_FH}, v0", f"v_add_u32 v17, {WS_FH}, v17", "s_mov_b64 exec, 3", f"buffer_store_dword v16, v17, {sr(WS_)}, s75 offen sc1", "s_mov_b64 exec, -1")
    m36 = magic(36, 575); m72 = magic(72, 575)
    for k in range(2):
        kb, cb = 62+3*k, 63+3*k
        d = 20+k
        a(f"s_mul_i32 s61, s{cb}, {m9}", "s_lshr_b32 s61, s61, 16", "s_mul_i32 s74, s61, 9", f"s_sub_u32 s74, s{cb}, s74", "s_lshl_b32 s74, s74, 6", "v_add_u32 v9, s74, v0")
        a(f"v_mul_u32_u24 v10, {m36}, v9", "v_lshrrev_b32 v10, 16, v10", "v_mul_u32_u24 v11, 36, v10", "v_sub_u32 v11, v9, v11")
        a("v_cmp_le_u32 vcc, 18, v11", "v_subrev_u32 v12, 2, v11", "v_cndmask_b32 v12, v11, v12, vcc")
        a("v_cndmask_b32 v13, 16, 2, vcc", "v_add_u32 v13, v13, v11", "v_subrev_u32 v14, 18, v11", "v_cndmask_b32 v14, v11, v14, vcc")
        a("v_cmp_le_u32 vcc, 16, v14", "s_nop 1", "v_cndmask_b32 v12, v12, v13, vcc")
        a("s_cmp_eq_u32 s61, 2", "s_cselect_b64 vcc, -1, 0", "v_cndmask_b32 v11, v11, v12, vcc")
        a(f"s_lshr_b32 s74, s{kb}, 2", f"s_and_b32 s{cb}, s{kb}, 3", f"s_lshl_b32 s{cb}, s{cb}, 8")
        a(f"s_mul_i32 s100, s74, 5120", f"s_add_u32 s100, s100, s{cb}", f"s_add_u32 s100, s100, {WS_WKV}")
        a(f"s_lshl_b32 s101, s74, 11", f"s_add_u32 s101, s101, s{cb}", f"s_add_u32 s101, s101, {WS_WQ}")
        a("s_lshl_b32 s74, s61, 6", f"s_add_u32 s74, s74, {4096 - 32*16}", "s_add_u32 s74, s74, s100")
        a(f"s_mov_b32 s{cb}, {WKV_N}", f"v_mul_lo_u32 v12, s{cb}, v10", "v_lshl_add_u32 v13, v11, 4, v12", "v_add_u32 v13, s74, v13")
        a("s_cmp_eq_u32 s61, 2", "s_cselect_b32 s74, 2048, 0", "s_add_u32 s100, s100, s74")
        a("s_cmp_eq_u32 s61, 0", "s_cselect_b32 s100, s101, s100", f"s_cselect_b32 s{cb}, {WQ_N}, s{cb}", f"v_mul_lo_u32 v12, s{cb}, v10")
        a("v_lshrrev_b32 v14, 4, v11", "v_lshlrev_b32 v14, 10, v14", "v_and_b32 v15, 15, v11", "v_lshl_add_u32 v14, v15, 4, v14", "v_add3_u32 v12, v12, v14, s100")
        a("v_cmp_le_u32 vcc, 32, v11", f"s_cmp_lt_u32 s{kb}, 72", f"s_cselect_b32 s74, 0, {OOB}", f"v_cndmask_b32 v{d}, v12, v13, vcc", f"v_add_u32 v{d}, s74, v{d}")
    a("s_lshl_b32 s61, s69, 6", "v_add_u32 v9, s61, v0", f"v_mul_u32_u24 v10, {m72}, v9", "v_lshrrev_b32 v10, 16, v10", "v_mul_u32_u24 v11, 72, v10", "v_sub_u32 v11, v9, v11")
    a("s_and_b32 s61, s68, 3", "s_lshl_b32 s74, s61, 8", "s_lshl_b32 s61, s61, 7", f"s_add_u32 s61, s61, {4096-1024}")
    a("v_lshrrev_b32 v12, 4, v11", "v_lshlrev_b32 v12, 10, v12", "v_and_b32 v13, 15, v11", "v_lshl_add_u32 v12, v13, 4, v12", "v_add_u32 v12, s74, v12")
    a("v_lshlrev_b32 v13, 4, v11", "v_add_u32 v13, s61, v13", "v_cmp_le_u32 vcc, 64, v11", f"s_mov_b32 s61, {W2_N}", "v_mul_lo_u32 v10, s61, v10", "v_cndmask_b32 v12, v12, v13, vcc")
    a("s_lshr_b32 s61, s68, 2", f"s_mul_i32 s61, s61, {W2_STEP}", f"s_add_u32 s61, s61, {WS_W2 + 36*W2_STEP}", "s_cmp_lt_u32 s60, 648", f"s_cselect_b32 s61, s61, {OOB}", "v_add3_u32 v22, v10, v12, s61")
    a(f"s_mul_i32 s61, s34, {m9}", "s_lshr_b32 s61, s61, 16", "s_mul_i32 s74, s61, 9", "s_sub_u32 s74, s34, s74")
    a(f"s_mul_i32 s61, s61, {W2_N}", f"s_mul_i32 s100, s35, {4*W2_STEP}", "s_add_u32 s61, s61, s100", f"s_add_u32 s61, s61, {WS_W2}")
    a("s_lshr_b32 s100, s74, 1", "s_lshl_b32 s100, s100, 10", "s_add_u32 s61, s61, s100", "s_and_b32 s100, s74, 1", "s_lshl_b32 s100, s100, 7", "s_add_u32 s61, s61, s100")
    a("s_cmp_lt_u32 s74, 8", "s_cselect_b32 s100, 8, 7", "s_cmp_lt_u32 s34, 72", f"s_cselect_b32 s61, s61, {OOB}")
    a("v_and_b32 v9, 3, v4", "v_lshlrev_b32 v9, s100, v9", "v_lshrrev_b32 v10, 2, v4", f"v_mul_u32_u24 v10, {W2_STEP}, v10", "v_add3_u32 v9, v9, v10, v5", "v_add_u32 v23, s61, v9")
    a("v_bfe_u32 v9, v0, 2, 2", "v_lshlrev_b32 v9, 7, v9", "v_lshrrev_b32 v10, 4, v0", "v_lshl_add_u32 v9, v10, 5, v9", "v_and_b32 v10, 3, v0", "v_lshl_add_u32 v9, v10, 3, v9", "v_add_u32 v9, s72, v9")
    a("v_lshlrev_b32 v10, 3, v5", "v_lshl_add_u32 v10, v4, 3, v10", "v_add_u32 v10, s72, v10")
    a("v_and_b32 v11, 15, v0", "v_lshrrev_b32 v12, 4, v0")
    a("v_bfe_u32 v13, v11, 1, 1", "v_lshrrev_b32 v14, 3, v11", "v_lshl_or_b32 v13, v14, 1, v13", "v_and_b32 v14, 4, v11", "v_or_b32 v13, v13, v14", "v_xor_b32 v13, v13, v12", "v_lshlrev_b32 v13, 4, v13")
    a("v_lshrrev_b32 v14, 2, v11", "v_lshlrev_b32 v14, 3, v14", "v_and_b32 v15, 3, v11", "v_add_u32 v14, v14, v15", "v_lshlrev_b32 v14, 7, v14")
    a(f"s_lshl_b32 s61, s{sW}, 12", f"s_add_u32 s61, s61, {L_RING}", "v_add_u32 v14, s61, v14")
    for j in range(2):
        for s2 in range(2):
            a(f"v_xor_b32 v15, {(j << 5) ^ (s2 << 6)}, v13", f"v_add_u32 v15, {j*512}, v15", f"v_add_u32 v{vXR+2*j+s2}, v14, v15")
    a("v_lshrrev_b32 v13, 1, v11", "v_xor_b32 v13, v13, v12", "v_lshlrev_b32 v13, 4, v13", "v_lshlrev_b32 v14, 7, v11", f"v_add_u32 v14, {L_RING+16384}, v14")
    for tp in range(2):
        for s2 in range(2):
            a(f"v_xor_b32 v15, {(tp << 5) ^ (s2 << 6)}, v13", f"v_add_u32 v{vWR+2*tp+s2}, v14, v15")
    a(f"v_mov_b32 v{vFL}, {L_FLG}", f"s_lshl_b32 s61, s{sW}, 2", "s_add_u32 s61, s61, 16", f"v_add_u32 v{vMY}, s61, v{vFL}")
    pass
    a("s_waitcnt vmcnt(6)")
    pass
    for k in range(3):
        a(f"ds_read_b64_tr_b16 v[{24+4*k}:{25+4*k}], v9 offset:{L_PACK + k*1024}", f"ds_read_b64_tr_b16 v[{26+4*k}:{27+4*k}], v9 offset:{L_PACK + k*1024 + 512}")
    for k in range(2):
        a(f"ds_read_b64 v[{36+4*k}:{37+4*k}], v10 offset:{L_PACK + 3072 + k*64}", f"ds_read_b64 v[{38+4*k}:{39+4*k}], v10 offset:{L_PACK + 4096 + k*64}")
    a(f"s_mov_b32 s61, {2*W2_STEP}")
    for k in range(3):
        a(f"s_waitcnt lgkmcnt({8-2*k})", f"buffer_store_dwordx4 {vr(24+4*k)}, v{20+k}, {sr(WS_)}, 0 offen sc1")
    a("s_waitcnt lgkmcnt(2)", f"buffer_store_dwordx4 v[36:39], v23, {sr(WS_)}, 0 offen sc1")
    a("s_waitcnt lgkmcnt(0)", f"buffer_store_dwordx4 v[40:43], v23, {sr(WS_)}, s61 offen sc1")
    a.stamp("S", "packst")
    if o.get("nost"): a(f"s_mov_b32 s{WS_+2}, {WS_SIZE}")
    vLam = 116
    a(f"s_cmp_lg_u32 s{sW}, 0", "s_cbranch_scc1 L_nolam")
    a("s_waitcnt vmcnt(8)")
    a("v_lshlrev_b32 v112, 16, v112", "v_lshlrev_b32 v113, 16, v113", "v_lshlrev_b32 v114, 16, v114")
    a(f"v_mul_f32 v114, {LOG2E}, v114", "v_exp_f32 v114, v114", "s_nop 0", "v_cvt_pk_bf16_f32 v114, v114, v114", "v_lshlrev_b32 v114, 16, v114")
    a("v_mul_f32 v44, v114, v112", "v_mul_f32 v45, v114, v113", f"v_mul_f32 v44, {LOG2E}, v44", "v_exp_f32 v44, v44", "v_mul_f32 v45, 0.15915494, v45", "v_fract_f32 v45, v45")
    a("v_cos_f32 v46, v45", "v_sin_f32 v47, v45", "s_nop 0", "v_mul_f32 v46, v44, v46", "v_mul_f32 v47, v44, v47")
    a("v_mul_f32 v44, v112, v112", "v_fmac_f32 v44, v113, v113", "v_rcp_f32 v44, v44", "v_add_f32 v45, -1.0, v46", "v_add_f32 v44, v44, v44")
    a("v_mul_f32 v48, v45, v112", "v_fmac_f32 v48, v47, v113", "v_mul_f32 v48, v48, v44")
    a("v_mul_f32 v49, v45, v113", "v_fma_f32 v49, -v47, v112, v49", "v_mul_f32 v49, v49, v44")
    a("v_mov_b32 v52, v46", "v_xor_b32 v53, 0x80000000, v47", "v_xor_b32 v54, 0x80000000, v48", "v_mov_b32 v55, v49")
    a("v_lshlrev_b32 v44, 5, v0", f"v_add_u32 v44, {L_LAM}, v44", "s_mov_b32 exec_hi, 0xff")
    a("ds_write_b128 v44, v[46:49]", "ds_write_b128 v44, v[52:55] offset:16", "s_mov_b64 exec, -1")
    for k in range(7):
        a("v_mul_f32 v44, v46, v46", "v_mul_f32 v45, v46, v47", "v_fma_f32 v46, -v47, v47, v44", "v_add_f32 v47, v45, v45")
        if k in (2, 6):
            b = vLam if k == 2 else vLam+4
            a(f"v_mov_b32 v{b}, v46", f"v_mov_b32 v{b+1}, v46", f"v_mov_b32 v{b+2}, v47", f"v_xor_b32 v{b+3}, 0x80000000, v47")
    a.label("L_nolam")
    pass
    def reads(j, s2):
        fb = sFB + s2*28; so = (j % 3)*SLOT
        for jj in range(2): a(f"ds_read_b128 {vr(fb + jj*4)}, v{vXR+2*jj+s2} offset:{so}")
        for t in range(5): a(f"ds_read_b128 {vr(fb + 8 + t*4)}, v{vWR+2*(t&1)+s2} offset:{so + t*2048}")
    def mm(s2, first):
        fb = sFB + s2*28
        for t in range(5):
            for jj in range(2):
                d = sU + (t*2+jj)*4
                a.mfma(d, fb + jj*4, fb + 8 + t*4, None if first else d)
    D0J = 2
    for j in range(9):
        if j == D0J: a("s_waitcnt vmcnt(0)")
        if j == 7:
            lp = "L_d0"
            a(f"s_lshl_b32 s61, s{sW}, 10", f"s_add_u32 s61, s61, {WS_D0}", "s_mov_b32 s62, 0"); a.label(lp)
            a(f"buffer_load_dword v4, v{vL16}, {sr(WS_)}, s61 offen sc1", "s_add_u32 s62, s62, 1", "s_waitcnt vmcnt(0)", "v_cmp_ne_u32 vcc, 1, v4",
              f"s_cmp_gt_u32 s62, {SPIN_G}", "s_cbranch_scc1 L_d0x", f"s_cbranch_vccnz {lp}"); a.label("L_d0x")
            a.stamp("S", "d0seen")
        a("s_waitcnt lgkmcnt(0)", "s_barrier")
        reads(j, 0)
        if j == D0J:
            a(f"s_cmp_lg_u32 s{sW}, 0", "s_cbranch_scc1 L_nod0", "s_mov_b32 s62, 0", "v_mov_b32 v5, 0", "s_mov_b64 exec, 1"); a.label("L_go")
            a(f"buffer_load_dword v4, v5, {sr(DBG_)}, 0 offen sc1", "s_add_u32 s62, s62, 1", "s_waitcnt vmcnt(0)", "v_cmp_ne_u32 vcc, 1, v4",
              f"s_cmp_gt_u32 s62, {SPIN_G}", "s_cbranch_scc1 L_gox", "s_cbranch_vccnz L_go"); a.label("L_gox")
            a("s_lshl_b32 s61, s2, 4", f"s_add_u32 s61, s61, {WS_D0}", "v_mov_b32 v4, 1", f"buffer_store_dword v4, v5, {sr(WS_)}, s61 offen sc1", "s_mov_b64 exec, -1")
            a.label("L_nod0")
            a.stamp("S", "d0flag")
        if j > 0: mm(1, False)
        reads(j, 1)
        a("s_waitcnt lgkmcnt(7)")
        mm(0, j == 0)
    a("s_waitcnt lgkmcnt(0)", "s_barrier")
    mm(1, False)
    a.stamp("S", "st1end")
    if o.get("stop") in (1, 2):
        a.dump(range(sU, sU+40), 0, 4); a("s_branch L_fin")
        return

    vI, vG = 4, 5; cK = 88; U2 = 48
    U = lambda t, k: sU + t*8 + k
    V = lambda t, k: U2 + t*8 + k
    a(f"v_and_b32 v{vI}, 15, v0", f"v_lshrrev_b32 v{vG}, 4, v0", f"v_lshlrev_b32 v6, 4, v{vI}", f"v_add_u32 v6, {L_LAM}, v6")
    for t in range(5): a(f"ds_read_b128 {vr(cK+4*t)}, v6 offset:{t*256}")
    a(f"s_lshl_b32 s61, s{sM}, 9", f"s_lshl_b32 s62, s{sW}, 7", "s_add_u32 s61, s61, s62", f"s_add_u32 s61, s61, {WS_G}", f"s_cmp_eq_u32 s{sN}, 0", f"s_cselect_b32 s61, s61, {OOB}")
    a(f"v_lshlrev_b32 v6, 5, v{vG}", "s_mov_b32 exec_lo, 0x01000100", "s_mov_b32 exec_hi, 0x01000100")
    a(f"buffer_store_dwordx4 {vr(U(4,0))}, v6, {sr(WS_)}, s61 offen sc1", f"buffer_store_dwordx4 {vr(U(4,4))}, v6, {sr(WS_)}, s61 offen offset:16 sc1", "s_mov_b64 exec, -1")
    a(f"s_lshl_b32 s61, s{sW}, 2", f"v_add_u32 v6, s61, v{vG}", "v_mul_u32_u24 v6, 320, v6", f"v_lshl_add_u32 v6, v{vI}, 2, v6", f"v_add_u32 v6, {L_EL}, v6")
    a("s_waitcnt lgkmcnt(0)")
    for k in range(8):
        for t in range(5): a(f"v_mul_f32 v{V(t,k)}, v{cK+4*t+2}, v{U(t,k)}")
        for t in range(5): a(f"v_fmac_f32_dpp v{V(t,k)}, v{U(t,k)}, v{cK+4*t+3} {QP}")
    for k in range(1, 8):
        src = lambda t: V(t, 0) if k == 1 else 8 + ((k-1) & 1)*5 + t
        dst = lambda t: 8 + (k & 1)*5 + t
        for t in range(5): a(f"v_fma_f32 v{dst(t)}, v{cK+4*t}, v{src(t)}, v{V(t,k)}")
        for t in range(5): a(f"v_fmac_f32_dpp v{dst(t)}, v{src(t)}, v{cK+4*t+1} {QP}")
    for t in range(5): a(f"ds_write_b32 v6, v{8+5+t} offset:{t*64}")
    a("s_waitcnt lgkmcnt(0)"); a.signal("S", 1, vMY, 7)
    a(f"s_mul_i32 s64, s{sN2}, {W2_N}", f"s_add_u32 s64, s64, {WS_W2}", f"s_mul_i32 s65, s{sW}, {9*W2_STEP}", "s_add_u32 s65, s65, s64")
    a(f"v_lshlrev_b32 v7, 7, v{vG}", "v_and_b32 v18, 7, v0", "v_lshl_add_u32 v7, v18, 4, v7", "v_add_u32 v7, 4096, v7")
    def w2_regs():
        a("s_mov_b32 s66, s65")
        for st_ in range(6):
            for t in range(4): a(f"buffer_load_dwordx4 {vr(136+st_*20+t*4)}, v{vL16}, {sr(WS_)}, s66 offen offset:{t*1024} sc1")
            a(f"buffer_load_dwordx4 {vr(136+st_*20+16)}, v7, {sr(WS_)}, s66 offen sc1", f"s_add_u32 s66, s66, {W2_STEP}")
    a(f"s_cmp_lg_u32 s{sW}, 0", "s_cbranch_scc1 L_nohorner")
    a.waitflags("S", 1, vFL, 24)
    a("v_lshlrev_b32 v18, 3, v0", f"v_add_u32 v19, {L_EL}, v18")
    for sg in range(16): a(f"ds_read_b64 {vr(136+2*sg,2)}, v19 offset:{sg*320}")
    def cstep(dst, h, e, lam, tmp=20):
        a(f"v_pk_fma_f32 {vr(tmp,2)}, {vr(lam,2)}, {vr(h,2)}, {vr(e,2)}")
        a(f"v_pk_fma_f32 {vr(dst,2)}, {vr(lam+2,2)}, {vr(h,2)}, {vr(tmp,2)} op_sel:[0,1,0] op_sel_hi:[1,0,1]")
    a(f"s_lshl_b32 s61, s{sN}, 4", f"s_add_u32 s61, s61, s{sM}", f"s_mul_i32 s61, s61, {E_STR}", f"s_add_u32 s61, s61, {WS_E}")
    for sg in range(1, 16):
        if sg == 1: a("s_waitcnt lgkmcnt(8)")
        if sg == 8: a("s_waitcnt lgkmcnt(0)")
        cstep(22, 136 if sg == 1 else 22, 136+2*sg, vLam)
    a("s_mov_b32 exec_hi, 0xf", f"buffer_store_dwordx2 v[22:23], v18, {sr(WS_)}, s61 offen sc1")
    a.stamp("S", "epub")
    a("s_mov_b32 s62, 0"); a.label("L_eg")
    for k in range(15):
        a(f"s_sub_u32 s63, s61, {(15-k)*E_STR}", f"s_cmp_ge_u32 s{sM}, {15-k}", f"s_cselect_b32 s63, s63, {OOB}", f"buffer_load_dwordx2 {vr(168+2*k,2)}, v18, {sr(WS_)}, s63 offen sc1")
    a("s_add_u32 s62, s62, 1", "s_waitcnt vmcnt(0)")
    for k in range(1, 15): cstep(24, 168 if k == 1 else 24, 168+2*k, vLam+4)
    a("v_cmp_u_f32 vcc, v24, v25", f"s_cmp_gt_u32 s62, {SPIN_G//8}", "s_cbranch_scc1 L_egx", "s_cbranch_vccnz L_eg"); a.label("L_egx")
    a.stamp("S", "egot")
    for sg in range(16):
        h = 24 + 2*(sg & 1)
        a(f"ds_write_b64 v19, {vr(h,2)} offset:{sg*320}")
        if sg < 15: cstep(24 + 2*((sg+1) & 1), h, 136+2*sg, vLam)
    a("s_mov_b64 exec, -1", "s_waitcnt lgkmcnt(0)"); a.signal("S", 2, vMY, 20)
    a.label("L_nohorner")
    w2_regs()
    a(f"v_add_u32 v18, 16, v{vFL}")
    a.waitflags("S", 2, vFL, 24, which=18)
    for t in range(5): a(f"ds_read_b32 v{8+t}, v6 offset:{t*64}")
    a(f"s_mul_i32 s61, s{sW}, {HT_W}", f"s_add_u32 s61, s61, {L_HT}", f"v_mul_u32_u24 v18, {HT_STR}, v{vI}", f"v_lshl_add_u32 v18, v{vG}, 4, v18", "v_add_u32 v18, s61, v18")
    a("s_waitcnt lgkmcnt(0)")
    for k in range(8):
        src = lambda t: 8+t if k == 0 else V(t, k-1)
        for t in range(5): a(f"v_fmac_f32 v{V(t,k)}, v{cK+4*t}, v{src(t)}")
        for t in range(5): a(f"v_fmac_f32_dpp v{V(t,k)}, v{src(t)}, v{cK+4*t+1} {QP}")
    for t in range(5):
        for k in range(4): a(f"v_cvt_pk_bf16_f32 v{24+4*t+k}, v{V(t,2*k)}, v{V(t,2*k+1)}")
    for t in range(5):
        if t == 4: a("s_mov_b32 exec_lo, 0x00ff00ff", "s_mov_b32 exec_hi, 0x00ff00ff")
        a(f"ds_write_b128 v18, {vr(24+4*t)} offset:{t*16*HT_STR}")
    a("s_mov_b64 exec, -1")
    a(f"v_bfe_u32 v19, v0, 2, 2", f"v_mul_u32_u24 v19, {2*HT_STR}, v19", "v_and_b32 v20, 3, v0", "v_lshl_add_u32 v19, v20, 3, v19", "v_add_u32 v19, s61, v19")
    a(f"s_lshl_b32 s61, s{sM}, 3", f"s_lshl_b32 s62, s{sW}, 1", "s_add_u32 s61, s61, s62", f"s_mul_i32 s61, s61, {A2H_T}", f"s_mul_i32 s62, s{sN}, 2304", "s_add_u32 s61, s61, s62", f"s_add_u32 s61, s61, {WS_A2H}")
    for sI in range(5):
        a(f"v_add_u32 v20, {4*sI}, v{vG}", "v_min_u32 v20, 17, v20", "v_cmp_lt_u32 vcc, 8, v20", f"v_mul_u32_u24 v21, {8*HT_STR}, v20", f"v_mov_b32 v22, {32 - 9*8*HT_STR}", "v_cndmask_b32 v22, 0, v22, vcc",
          f"v_add3_u32 v{8+sI}, v19, v21, v22", f"v_mov_b32 v22, {A2H_T - 2304}", "v_cndmask_b32 v22, 0, v22, vcc", f"v_add3_u32 v{13+sI}, v{vL16}, v22, {0}" if False else f"v_add_u32 v{13+sI}, v{vL16}, v22")
    a("s_waitcnt lgkmcnt(0)")
    for sI in range(5):
        a(f"ds_read_b64_tr_b16 {vr(48+4*sI,2)}, v{8+sI}", f"ds_read_b64_tr_b16 {vr(50+4*sI,2)}, v{8+sI} offset:{HT_STR}")
    for sI in range(5):
        a(f"s_waitcnt lgkmcnt({8-2*sI})")
        if sI == 4: a("s_mov_b32 exec_hi, 0", "s_add_u32 s61, s61, 4096")
        a(f"buffer_store_dwordx4 {vr(48+4*sI)}, v{13+sI}, {sr(WS_)}, s61 offen offset:{(sI%4)*1024} sc1")
    a(f"s_add_u32 s62, s75, {WS_FH}", "s_mov_b64 exec, 1", "v_mov_b32 v20, 1", "v_mov_b32 v21, 0", "s_waitcnt vmcnt(0)", f"buffer_store_dword v20, v21, {sr(WS_)}, s62 offen sc1", "s_mov_b64 exec, -1")
    a.stamp("S", "hpub")
    a.waitflags("A", 6, vFL, 24)
    a(f"s_lshl_b32 s61, s{sW}, 10", f"s_add_u32 s62, s64, {36*W2_STEP}", "s_add_u32 s62, s62, s61")
    for q in range(21):
        if q == 20: a(f"s_cmp_eq_u32 s{sW}, 0", "s_cbranch_scc0 L_nowo")
        a(f"s_add_u32 m0, s61, {L_WO + q*4096}", "s_nop 0", f"buffer_load_dwordx4 v{vL16}, {sr(WS_)}, s62 offen sc1 lds", "s_add_u32 s62, s62, 4096")
    a.label("L_nowo")
    a.signal("S", 3, vMY, 20)
    a.waitflags("A", 7, vFL, 24); a.waitflags("S", 3, vFL, 24)
    a(f"s_mul_i32 s67, s{sW}, {SP_W}", f"s_add_u32 s67, s67, {L_SP}", f"s_add_u32 s62, s65, {6*W2_STEP}")
    for q in range(14):
        if q == 13: a("s_mov_b32 exec_hi, 0")
        a(f"s_add_u32 m0, s67, {q*1024}", "s_nop 0", f"buffer_load_dwordx4 v{vL16}, {sr(WS_)}, s62 offen sc1 lds", "s_add_u32 s62, s62, 1024")
    a("s_mov_b64 exec, -1")
    a("s_waitcnt vmcnt(14)"); a.signal("S", 4, vMY, 20)
    a(f"s_lshl_b32 s61, s{sM2}, 9", f"s_lshl_b32 s62, s{sW}, 6", "s_add_u32 s61, s61, s62", f"s_add_u32 s61, s61, {WS_FH}")
    a("v_lshrrev_b32 v20, 2, v0", "v_lshlrev_b32 v20, 8, v20", "v_and_b32 v21, 3, v0", "v_lshl_add_u32 v20, v21, 4, v20")
    a("s_mov_b32 s62, 0", "s_mov_b64 exec, 0xff"); a.label("L_fh")
    a(f"buffer_load_dword v21, v20, {sr(WS_)}, s61 offen sc1", "s_add_u32 s62, s62, 1", "s_waitcnt vmcnt(0)", "v_cmp_ne_u32 vcc, 1, v21",
      f"s_cmp_gt_u32 s62, {SPIN_G}", "s_cbranch_scc1 L_fhx", "s_cbranch_vccnz L_fh"); a.label("L_fhx")
    a("s_mov_b64 exec, -1")
    a.stamp("S", "hseen")
    a(f"s_mul_i32 s61, s{sM2}, {4*A2H_T}", f"s_mul_i32 s62, s{sW}, 9216", "s_add_u32 s61, s61, s62", f"s_add_u32 s68, s61, {WS_A2H}")
    for aa in range(1, 4): a(f"s_add_u32 s{68+aa}, s{67+aa}, {A2H_T}")
    a(f"v_add_u32 v6, s67, v{vL16}", "v_add_u32 v7, s67, v7")
    def a_loads(st_):
        if st_ in (4, 8):
            for aa in range(4): a(f"s_add_u32 s{68+aa}, s{68+aa}, 4096")
        for aa in range(4): a(f"buffer_load_dwordx4 {vr(88+(st_%3)*16+aa*4)}, v{vL16}, {sr(WS_)}, s{68+aa} offen offset:{(st_%4)*1024} sc1")
    for st_ in range(3): a_loads(st_)
    for st_ in range(9):
        a(f"s_waitcnt vmcnt({4*min(2, 8-st_)})" + (" lgkmcnt(0)" if st_ == 6 else ""))
        wb = 136 + (st_ % 6)*20
        for aa in range(4):
            for t in range(5):
                d = 8 + (aa*5+t)*4
                a.mfma(d, wb+t*4, 88+(st_%3)*16+aa*4, None if st_ == 0 else d)
        if st_+3 < 9: a_loads(st_+3)
        if st_ < 3:
            for t in range(4): a(f"ds_read_b128 {vr(wb+t*4)}, v6 offset:{st_*W2_STEP + t*1024}")
            a(f"ds_read_b128 {vr(wb+16)}, v7 offset:{st_*W2_STEP}")
    a.stamp("S", "hgemm")
    a(f"v_mul_u32_u24 v88, {magic(18,63)}, v0", "v_lshrrev_b32 v88, 16, v88", "v_mul_u32_u24 v89, 18, v88", "v_sub_u32 v89, v0, v89")
    a(f"s_lshl_b32 s61, s{sM2}, 2", f"s_add_u32 s61, s61, s{sW}", f"s_mul_i32 s62, s61, {16*1152}", f"s_mul_i32 s63, s{sN2}, 144", "s_add_u32 s62, s62, s63")
    a("v_mul_u32_u24 v90, 1152, v88", "v_lshl_add_u32 v90, v89, 3, v90", "v_lshlrev_b32 v91, 3, v89", "v_add_u32 v91, s63, v91")
    a("s_mov_b32 exec_hi, 0x3fffff")
    for k in range(6):
        if k == 5: a("s_mov_b64 exec, 0x3ffff")
        a(f"buffer_load_dwordx2 {vr(96+2*k,2)}, v90, {sr(X_)}, s62 offen", f"s_add_u32 s62, s62, {3*1152}")
    a("s_mov_b64 exec, -1", f"global_load_dwordx2 v[108:109], v91, s[{pDSK}:{pDSK+1}]")
    a(f"v_mul_u32_u24 v92, {SP_STR}, v{vI}", f"v_lshl_add_u32 v92, v{vG}, 4, v92", "v_add_u32 v92, s67, v92")
    a.waitflags("A", 9, vFL, 136)
    for aa in range(4):
        for t in range(4): a(f"ds_write_b128 v92, {vr(8+(aa*5+t)*4)} offset:{aa*16*SP_STR + t*64}")
    a("s_mov_b32 exec_hi, 0")
    for aa in range(4): a(f"ds_write_b128 v92, {vr(8+(aa*5+4)*4)} offset:{aa*16*SP_STR + 256}")
    a("s_mov_b64 exec, -1", "s_waitcnt lgkmcnt(0)"); a.signal("S", 5, vMY, 93); a.waitflags("S", 5, vFL, 136)
    a("s_lshl_b32 s61, s61, 6", f"s_add_u32 s61, s61, {WS_G}", "v_lshlrev_b32 v93, 2, v88")
    for k in range(6): a(f"buffer_load_dword v{110+2*k}, v93, {sr(WS_)}, s61 offen offset:{k*12} sc1")
    a(f"s_mul_i32 s62, s{sW}, {16*SP_STR}", f"s_add_u32 s62, s62, {L_SP}", f"v_add_u32 v94, s62, v{vL16}")
    for k in range(6):
        for b in range(4): a(f"ds_read_b128 {vr(136+(k*4+b)*4)}, v94 offset:{b*SP_W + k*864}")
        if k % 3 == 2: a("s_waitcnt lgkmcnt(0)")
    for k in range(6):
        for h in range(2):
            r = 136 + k*16 + 2*h
            a(f"v_pk_add_f32 {vr(r,2)}, {vr(r,2)}, {vr(r+4,2)}", f"v_pk_add_f32 {vr(r+8,2)}, {vr(r+8,2)}, {vr(r+12,2)}", f"v_pk_add_f32 {vr(r,2)}, {vr(r,2)}, {vr(r+8,2)}")
    a("s_waitcnt vmcnt(0)")
    a("v_lshlrev_b32 v8, 16, v108", "v_and_b32 v9, 0xffff0000, v108", "v_lshlrev_b32 v10, 16, v109", "v_and_b32 v11, 0xffff0000, v109")
    for k in range(6):
        g_ = 110 + 2*k
        a(f"v_cvt_pk_bf16_f32 v{g_}, v{g_}, v{g_}", f"v_lshlrev_b32 v{g_}, 16, v{g_}", f"v_mul_f32 v{g_}, {LOG2E | 0x80000000}, v{g_}", f"v_exp_f32 v{g_}, v{g_}", f"v_add_f32 v{g_}, 1.0, v{g_}", f"v_rcp_f32 v{g_}, v{g_}",
          f"v_cvt_pk_bf16_f32 v{g_}, v{g_}, v{g_}", f"v_lshlrev_b32 v{g_}, 16, v{g_}", f"v_sub_f32 v{g_+1}, 1.0, v{g_}", f"v_cvt_pk_bf16_f32 v{g_+1}, v{g_+1}, v{g_+1}", f"v_lshlrev_b32 v{g_+1}, 16, v{g_+1}")
        xk = 96 + 2*k
        a(f"v_lshlrev_b32 v12, 16, v{xk}", f"v_and_b32 v13, 0xffff0000, v{xk}", f"v_lshlrev_b32 v14, 16, v{xk+1}", f"v_and_b32 v15, 0xffff0000, v{xk+1}")
        a("v_pk_mul_f32 v[12:13], v[12:13], v[8:9]", "v_pk_mul_f32 v[14:15], v[14:15], v[10:11]", "v_cvt_pk_bf16_f32 v13, v12, v13", "v_cvt_pk_bf16_f32 v15, v14, v15")
        a("v_lshlrev_b32 v12, 16, v13", "v_and_b32 v13, 0xffff0000, v13", "v_lshlrev_b32 v14, 16, v15", "v_and_b32 v15, 0xffff0000, v15")
        r = 136 + k*16
        for h in range(2):
            a(f"v_pk_add_f32 {vr(r+2*h,2)}, {vr(r+2*h,2)}, {vr(12+2*h,2)}", f"v_pk_mul_f32 {vr(r+2*h,2)}, {vr(r+2*h,2)}, {vr(g_,2)} op_sel_hi:[1,0]")
    a(f"s_lshl_b32 s63, s{sW}, 6", f"s_add_u32 s63, s63, {L_OMG}", "v_add_u32 v93, s63, v93")
    a("s_mov_b32 exec_hi, 0x3fffff")
    for k in range(6):
        if k == 5: a("s_mov_b64 exec, 0x3ffff")
        a(f"ds_write_b128 v94, {vr(136+k*16)} offset:{k*864}", f"ds_write_b32 v93, v{111+2*k} offset:{k*12}")
    a("s_mov_b64 exec, -1", "s_waitcnt lgkmcnt(0)"); a.signal("S", 6, vMY, 93)
    a("s_branch L_fin")

def finish(a):
    a.label("L_fin")
    if a.opt.get("stamps"):
        a("s_memrealtime s[98:99]", "s_waitcnt lgkmcnt(0)")
        a(f"s_cmp_lg_u32 s{sW}, 0", "s_cbranch_scc1 L_end")
        a("s_mul_i32 s60, s2, 192", f"s_lshr_b32 s61, s{sWAVE}, 2", "s_mul_i32 s61, s61, 96", "s_add_u32 s60, s60, s61", f"s_add_u32 s60, s60, {WS_STAMP}", "v_mov_b32 v1, 0", "s_mov_b64 exec, 1")
        for i in range(12):
            a(f"v_mov_b32 v2, s{76+2*i}", f"v_mov_b32 v3, s{77+2*i}", f"buffer_store_dwordx2 v[2:3], v1, {sr(WS_)}, s60 offen offset:{8*i}", "s_nop 1")
    a.label("L_end"); a("s_endpgm")
    a(".p2align 8", ".fill 8192, 4, 0xbf800000")

HDR = "".join(l for l in open("cdna_kernels/" + NAME + ".s.ref").readlines()[:18]) if __import__("os").path.exists("cdna_kernels/" + NAME + ".s.ref") else ""
def build(opt):
    a = G(opt)
    prologue(a); S_code(a); A_code(a); finish(a)
    a.lines = hazard.pad(a.lines, opt.get("verbose"))
    if opt.get("stamps"): open(opt["out"] + ".stn", "w").write(" ".join(a.stn["S"] + ["-"]*(11-len(a.stn["S"])) + ["end"] + a.stn["A"] + ["-"]*(11-len(a.stn["A"])) + ["end"]))
    if opt.get("stamps"): print("S stamps", a.stn["S"], "A stamps", a.stn["A"])
    return file_text([(NAME+"_kernel", 256, 512, L_END)], [kernel_text(NAME+"_kernel", a.text(), vgpr=256, sgpr=102)], header=("; STAMPS " + open(opt["out"] + ".stn").read() + "\n") if opt.get("stamps") else HDR)

if __name__ == "__main__":
    opt = {}
    out = sys.argv[1]
    for kv in sys.argv[2:]:
        k, v = kv.split("="); opt[k] = int(v)
    opt["out"] = out
    open(out, "w").write(build(opt))
```
